```python
import torch

def _softmax(x, axis=-1):
    return torch.softmax(x, dim=axis)
def _gelu(x):
    return torch.nn.functional.gelu(x, approximate="tanh")
def _silu(x):
    return torch.nn.functional.silu(x)
def _sigmoid(x):
    return torch.sigmoid(x)
def _layernorm(x, axis=-1, eps=1e-5):
    m = x.mean(dim=axis, keepdim=True)
    v = x.var(dim=axis, keepdim=True, unbiased=False)
    return (x - m) / torch.sqrt(v + eps)
def _scatter_add(tgt, idx, src, axis=0):
    return tgt.clone().index_add_(axis, idx, src)
def _segment_sum(src, seg, n):
    out = torch.zeros((n,) + src.shape[1:], dtype=src.dtype)
    return out.index_add_(0, seg, src)
def _pad(x, pw):
    flat = tuple(v for pair in reversed(pw) for v in pair)
    return torch.nn.functional.pad(x, flat)

kernel_name = 'gather_scatter__molecular_angular_gemnet__graph'

def setup_inputs():

    _w = (lambda a: (lambda t: t.to(torch.bfloat16) if t.is_floating_point() else t)(torch.as_tensor(a)))
    N, deg, De, L = 10000, 32, 16, 3
    E = N * deg
    T = E * deg
    NR = 8
    dist = torch.rand(E).to(float)
    angle = (torch.rand(T) * torch.pi).to(float)
    centers = torch.linspace(0.0, 1.0, NR).to(float)
    ang_freq = torch.arange(1, L + 1).to(float)
    return {
        "m": _w((lambda *s: torch.randn(*s, dtype=torch.bfloat16) * 0.05)(E, De)),
        "idx_in": _w((lambda lo, hi, *s: torch.randint(lo, hi, s))(0, E, T).to(torch.int64)),
        "idx_out": _w((lambda lo, hi, *s: torch.randint(lo, hi, s))(0, E, T).to(torch.int64)),
        "dist": _w(dist),
        "angle": _w(angle),
        "centers": _w(centers),
        "ang_freq": _w(ang_freq),
        "w_rbf": _w((lambda *s: torch.randn(*s, dtype=torch.bfloat16) * 0.2)(NR, De)),
        "w_sbf": _w((lambda *s: torch.randn(*s, dtype=torch.bfloat16) * 0.2)(NR * L, De)),
        "w_down": _w((lambda *s: torch.randn(*s, dtype=torch.bfloat16) * 0.2)(De, De)),
        "w_up": _w((lambda *s: torch.randn(*s, dtype=torch.bfloat16) * 0.2)(De, De)),
    }

def reference(m, idx_in, idx_out, dist, angle, centers, ang_freq, w_rbf, w_sbf, w_down, w_up):
    E, De = m.shape[0], m.shape[1]
    NR = centers.shape[0]
    L = ang_freq.shape[0]
    rbf = torch.exp(-10.0 * (dist[:, None] - centers[None, :]) ** 2)
    cbf = torch.cos(ang_freq[None, :] * angle[:, None])
    rbf_t = rbf[idx_out]
    sbf = torch.reshape(rbf_t[:, :, None] * cbf[:, None, :], (-1, NR * L))
    x = (m[idx_in] @ w_down) * (sbf @ w_sbf)
    agg = _segment_sum(x, idx_out, E)
    return m + (agg @ w_up) * (rbf @ w_rbf)
```

```python
import re

class Asm:
    def __init__(self):
        self.lines = []
        self.uid = 0
    def __call__(self, s=""):
        for l in s.split("\n"):
            l = l.strip()
            if l:
                self.lines.append(l)
    def label(self, name):
        self.lines.append(name + ":")
    def newlabel(self, base):
        self.uid += 1
        return f"L_{base}_{self.uid}"
    def c(self, s):
        self.lines.append("; " + s)
    def raw(self, s):
        self.lines.append(s)
    def text(self):
        out = []
        for l in self.lines:
            if l.endswith(":") or l.startswith(".") or l.startswith(";"):
                out.append(l)
            else:
                out.append("    " + l)
        return "\n".join(out) + "\n"

def _regs(tok):
    tok = tok.strip()
    m = re.fullmatch(r"([vsa])\[(\d+):(\d+)\]", tok)
    if m:
        return {f"{m.group(1)}{i}" for i in range(int(m.group(2)), int(m.group(3)) + 1)}
    m = re.fullmatch(r"([vsa])(\d+)", tok)
    if m:
        return {tok}
    if tok == "vcc":
        return {"vcc"}
    if tok in ("vcc_lo", "vcc_hi"):
        return {"vcc"}
    if tok == "exec" or tok in ("exec_lo", "exec_hi"):
        return {"exec"}
    if tok == "m0":
        return {"m0"}
    return set()

TRANS = ("v_exp_f32", "v_log_f32", "v_rcp_f32", "v_rsq_f32", "v_sqrt_f32", "v_sin_f32", "v_cos_f32")

class Ins:
    def __init__(self, text, idx):
        self.text = text
        self.idx = idx
        t = text.split(";")[0].strip()
        parts = t.split(None, 1)
        self.op = parts[0]
        rest = parts[1] if len(parts) > 1 else ""
        ops = [o.strip() for o in re.split(r",(?![^\[]*\])", rest)] if rest else []
        mods = ""
        if ops:
            last = ops[-1].split(None, 1)
            ops[-1] = last[0]
            mods = last[1] if len(last) > 1 else ""
        self.ops = ops
        self.mods = mods
        op = self.op
        self.is_valu = op.startswith("v_")
        self.is_mfma = op.startswith("v_mfma")
        self.is_salu = op.startswith("s_") and not op.startswith(("s_waitcnt", "s_nop", "s_barrier", "s_cbranch", "s_branch", "s_endpgm", "s_load", "s_setprio", "s_sleep"))
        self.is_ds = op.startswith("ds_")
        self.is_vmem = op.startswith(("buffer_", "global_"))
        self.is_dpp = ("dpp" in op) or any(k in mods for k in ("quad_perm", "row_shr", "row_shl", "row_bcast", "row_newbcast", "row_ror", "row_mirror", "row_half_mirror", "wave_"))
        self.is_trans = any(op.startswith(x) for x in TRANS)
        self.w = set(); self.r = set()
        R = [_regs(o) for o in ops]
        if self.is_valu:
            if op.startswith("v_cmpx"):
                self.w |= {"exec"}
                if ops[0] in ("vcc",) or ops[0].startswith("s["): self.w |= R[0]
                for x in R[1:]: self.r |= x
                self.r |= {"exec"}
            elif op.startswith("v_cmp"):
                self.w |= R[0]
                for x in R[1:]: self.r |= x
            elif op.startswith(("v_readlane", "v_readfirstlane")):
                self.w |= R[0]
                for x in R[1:]: self.r |= x
            elif op.startswith(("v_add_co", "v_sub_co", "v_addc_co", "v_subb_co", "v_subrev_co")):
                self.w |= R[0] | R[1]
                for x in R[2:]: self.r |= x
            elif op.startswith("v_cndmask"):
                self.w |= R[0]
                for x in R[1:]: self.r |= x
                if len(ops) == 3: self.r |= {"vcc"}
            else:
                self.w |= R[0]
                for x in R[1:]: self.r |= x
                if op.startswith(("v_fmac", "v_mac", "v_writelane")) or "UNUSED_PRESERVE" in mods or self.is_dpp:
                    self.r |= R[0]
        elif self.is_ds:
            if op.startswith(("ds_read", "ds_bpermute", "ds_permute", "ds_swizzle")) or "_rtn" in op:
                self.w |= R[0]
                for x in R[1:]: self.r |= x
            else:
                for x in R: self.r |= x
        elif self.is_vmem:
            if "load" in op and " lds" not in (" " + mods):
                self.w |= R[0]
                for x in R[1:]: self.r |= x
            elif "atomic" in op and "sc0" in mods:
                self.w |= R[0]
                for x in R: self.r |= x
            else:
                for x in R: self.r |= x
            if " lds" in (" " + mods): self.r |= {"m0"}
        elif op.startswith("s_load"):
            self.w |= R[0]
            for x in R[1:]: self.r |= x
        elif self.is_salu:
            if op.startswith("s_cmp") or op.startswith("s_bitcmp"):
                for x in R: self.r |= x
            elif "saveexec" in op:
                self.w |= R[0] | {"exec"}
                for x in R[1:]: self.r |= x
                self.r |= {"exec"}
            else:
                if R: self.w |= R[0]
                for x in R[1:]: self.r |= x
        self.states = 1
        if op == "s_nop":
            self.states = int(ops[0], 0) + 1

def check(lines, name=""):
    ins = []
    labels = {}
    for l in lines:
        if l.startswith(";") or l.startswith("."):
            continue
        if l.endswith(":"):
            labels[l[:-1]] = len(ins)
            continue
        ins.append(Ins(l, len(ins)))
    n = len(ins)
    preds = [[] for _ in range(n + 1)]
    for i, x in enumerate(ins):
        if x.op == "s_endpgm":
            continue
        if x.op.startswith(("s_cbranch", "s_branch")):
            tgt = labels.get(x.ops[0])
            if tgt is None:
                raise Exception(f"unknown label {x.ops[0]}")
            preds[tgt].append(i)
            if x.op == "s_branch":
                continue
        preds[i + 1].append(i)
    problems = []
    def isv(r): return r[0] == "v" and r[1:].isdigit() or (r[0] == "a" and r[1:].isdigit())
    def iss(r): return (r[0] == "s" and r[1:].isdigit()) or r == "vcc"
    def rule(p, c):
        need = 0
        vw = {r for r in p.w if isv(r)}
        sw = {r for r in p.w if iss(r)}
        if p.is_valu and not p.is_mfma:
            if c.is_dpp and c.is_valu and (vw & _regs(c.ops[1])): need = max(need, 2)
            if c.is_mfma and (vw & c.r): need = max(need, 2)
            if c.op.startswith(("v_readlane", "v_readfirstlane")) and (vw & _regs(c.ops[1])): need = max(need, 1)
            if c.op.startswith("v_permlane") and (vw & c.r): need = max(need, 2)
            if p.is_trans and c.is_valu and not c.is_trans and (vw & c.r): need = max(need, 1)
            if p.is_trans and (c.is_ds or c.is_vmem) and (vw & c.r): need = max(need, 1)
            if sw:
                if c.is_vmem and (sw & c.r): need = max(need, 5)
                if c.is_valu and (sw & c.r):
                    if c.op.startswith(("v_readlane", "v_writelane")) and len(c.ops) > 2 and (sw & _regs(c.ops[2])): need = max(need, 4)
                    else: need = max(need, 2)
            if "exec" in p.w:
                if c.is_dpp: need = max(need, 5)
                if c.is_mfma: need = max(need, 4)
                if c.op.startswith(("v_readlane", "v_readfirstlane", "v_writelane")): need = max(need, 4)
            if ("sdwa" in p.op and "dst_sel" in p.mods and "dst_sel:DWORD" not in p.mods) and c.is_valu and (vw & (c.r | c.w)): need = max(need, 1)
        if p.is_mfma:
            passes = 8 if "32x32" in p.op else 4
            big = {4: 8, 8: 12}[passes]
            if c.is_mfma:
                cd = _regs(c.ops[3])
                if (vw & cd):
                    if vw == cd: pass
                    else: need = max(need, {4: 6, 8: 10}[passes])
                if vw & (_regs(c.ops[1]) | _regs(c.ops[2])): need = max(need, big)
            elif (c.is_valu and (vw & (c.r | c.w))) or ((c.is_ds or c.is_vmem) and (vw & (c.r | c.w))):
                need = max(need, big)
            if c.is_valu and not c.is_mfma and (_regs(p.ops[3]) & c.w): need = max(need, {4: 3, 8: 7}[passes])
        if p.is_salu and "m0" in p.w and ((c.is_vmem and "m0" in c.r) or "addtid" in c.op): need = max(need, 1)
        if p.is_vmem and "store" in p.op and ("x4" in p.op or "x3" in p.op):
            data = _regs(p.ops[0])
            if c.is_valu and (data & c.w): need = max(need, 2)
            elif (c.is_ds or c.is_vmem) and (data & c.w): need = max(need, 1)
        return need
    MAXD = 13
    for ci, c in enumerate(ins):
        seen = {}
        stack = [(p, 0) for p in preds[ci]]
        while stack:
            pi, d = stack.pop()
            if d >= MAXD: continue
            if pi in seen and seen[pi] <= d: continue
            seen[pi] = d
            p = ins[pi]
            need = rule(p, c)
            if need > d:
                problems.append(f"[{name}] hazard: need {need} have {d}:\n   P[{pi}] {p.text}\n   C[{ci}] {c.text}")
            nd = d + p.states
            for q in preds[pi]:
                stack.append((q, nd))
    return problems
```

```python
from asmlib import Asm

NCHUNK = 250
CH = 40960
CSTRIDE = 344064
TABOFF = 0x5400000
TABSIZE = 500 * 4096
WIN = 8448
P1_LDS = WIN + 131072
NAME = "partition_kernel"

def gen_p1(a: Asm, opt=None):
    opt = opt or {}
    a.label(NAME)
    END = "L_p1_end"
    a(f"s_cmp_ge_u32 s2, {NCHUNK}")
    a(f"s_cbranch_scc1 {END}")
    a("s_load_dwordx4 s[4:7], s[0:1], 8")
    a("s_load_dwordx2 s[8:9], s[0:1], 32")
    a("s_load_dwordx2 s[10:11], s[0:1], 104")
    a("v_lshlrev_b32 v1, 4, v0")
    a("v_lshlrev_b32 v2, 3, v0")
    a("s_mul_i32 s32, s2, 163840")
    a("s_mul_i32 s33, s2, 81920")
    a(f"s_mul_i32 s34, s2, {CSTRIDE}")
    a("s_waitcnt lgkmcnt(0)")
    a("s_add_u32 s12, s4, s32"); a("s_addc_u32 s13, s5, 0"); a("s_mov_b32 s14, 163840"); a("s_mov_b32 s15, 0x00020000")
    a("s_add_u32 s16, s6, s32"); a("s_addc_u32 s17, s7, 0"); a("s_mov_b32 s18, 163840"); a("s_mov_b32 s19, 0x00020000")
    a("s_add_u32 s20, s8, s33"); a("s_addc_u32 s21, s9, 0"); a("s_mov_b32 s22, 81920"); a("s_mov_b32 s23, 0x00020000")
    def R(j, k): return 8 + 8 * j + k
    def ANG(j): return 88 + 2 * j
    for j in range(10):
        a(f"s_mov_b32 s36, {j*16384}")
        a(f"s_mov_b32 s37, {j*8192}")
        a(f"buffer_load_dwordx4 v[{R(j,0)}:{R(j,3)}], v1, s[16:19], s36 offen nt")
        a(f"buffer_load_dwordx4 v[{R(j,4)}:{R(j,7)}], v1, s[12:15], s36 offen nt")
        a(f"buffer_load_dwordx2 v[{ANG(j)}:{ANG(j)+1}], v2, s[20:23], s37 offen nt")
    a("s_add_u32 s24, s10, s34"); a("s_addc_u32 s25, s11, 0"); a(f"s_mov_b32 s26, {CSTRIDE}"); a("s_mov_b32 s27, 0x00020000")
    a(f"s_add_u32 s28, s10, {TABOFF}"); a("s_addc_u32 s29, s11, 0"); a(f"s_mov_b32 s30, {TABSIZE}"); a("s_mov_b32 s31, 0x00020000")
    a("v_mov_b32 v4, 0"); a("v_mov_b32 v5, 0")
    a("ds_write_b64 v2, v[4:5]")
    a("v_and_b32 v3, 63, v0")
    a("v_lshlrev_b32 v6, 2, v3")
    a("ds_write_b32 v6, v4 offset:8192")
    a("s_mov_b32 s40, 6710887")
    a("s_mov_b32 s41, 52429")
    a("s_mov_b32 s42, -640")
    a("s_mov_b32 s43, -81920")
    a(f"s_mov_b32 s44, {64<<22}")
    a("s_mov_b32 s45, 0x05040100")
    a("s_mov_b32 s46, 0x05040302")
    a("v_mov_b32 v7, 1")
    a("v_lshrrev_b32 v4, 6, v0")
    a("s_nop 0")
    a("v_readfirstlane_b32 s47, v4")
    a("s_waitcnt lgkmcnt(0)")
    a("s_barrier")
    B = [108 + k for k in range(4)]; S = [112 + k for k in range(4)]
    E = [116 + k for k in range(4)]; RW = [120 + k for k in range(4)]
    for j in range(10):
        a(f"s_waitcnt vmcnt({27 - 3*j})")
        X = [R(j, k) for k in range(4)]; Y = [R(j, 4 + k) for k in range(4)]
        for k in range(4): a(f"v_mul_hi_u32 v{B[k]}, v{X[k]}, s40")
        for k in range(4): a(f"v_mul_hi_u32 v{S[k]}, v{Y[k]}, s41")
        for k in range(4): a(f"v_mad_i32_i24 v{E[k]}, v{B[k]}, s42, v{X[k]}")
        for k in range(4): a(f"v_mad_i32_i24 v{RW[k]}, v{S[k]}, s43, v{Y[k]}")
        for k in range(4): a(f"v_lshl_add_u32 v{B[k]}, v{B[k]}, 2, v{S[k]}")
        for k in range(4): a(f"v_lshlrev_b32 v{B[k]}, 2, v{B[k]}")
        for k in range(4): a(f"ds_add_u32 v{B[k]}, v7")
        for k in range(4): a(f"v_lshl_add_u32 v{RW[k]}, v{RW[k]}, 5, s44")
        for k in range(4): a(f"v_lshl_add_u32 v{R(j,2*k)}, v{E[k]}, 22, v{RW[k]}")
        for k in range(4): a(f"v_perm_b32 v{R(j,2*k+1)}, v{B[k]}, v{ANG(j) + (k>>1)}, {'s45' if k%2==0 else 's46'}")
    a("s_waitcnt lgkmcnt(0)")
    a("s_barrier")
    L1 = "L_p1_noscan1"
    for i in range(4):
        a(f"v_mov_b32 v{88+2*i}, 0")
        a(f"v_mov_b32 v{89+2*i}, 0xffff0000")
    a("s_cmp_ge_u32 s47, 8")
    a(f"s_cbranch_scc1 {L1}")
    a("ds_read_b128 v[108:111], v1")
    a("s_waitcnt lgkmcnt(0)")
    for i in range(4): a(f"v_add_u32 v{112+i}, 1, v{108+i}")
    for i in range(4): a(f"v_and_b32 v{112+i}, -2, v{112+i}")
    a("v_add_u32 v116, v112, v113"); a("v_add_u32 v117, v114, v115"); a("v_add_u32 v116, v116, v117")
    a("v_mov_b32 v117, v116")
    a("s_nop 1")
    for sh in (1, 2, 4, 8):
        a(f"v_add_u32_dpp v117, v117, v117 row_shr:{sh} row_mask:0xf bank_mask:0xf bound_ctrl:0")
        a("s_nop 1")
    a("v_add_u32_dpp v117, v117, v117 row_bcast:15 row_mask:0xa bank_mask:0xf")
    a("s_nop 1")
    a("v_add_u32_dpp v117, v117, v117 row_bcast:31 row_mask:0xc bank_mask:0xf")
    a("s_nop 1")
    a("v_readlane_b32 s48, v117, 63")
    a("s_add_u32 s49, s47, 1")
    a("s_lshl_b32 s50, -1, s49")
    a("s_and_b32 s50, s50, 0x1ff")
    a("v_mov_b32 v118, s48")
    a("s_mov_b32 exec_lo, s50"); a("s_mov_b32 exec_hi, 0")
    a("ds_add_u32 v6, v118 offset:8192")
    a("s_mov_b64 exec, -1")
    a.label(L1)
    a("s_waitcnt lgkmcnt(0)")
    a("s_barrier")
    L2 = "L_p1_noscan2"
    a("v_mov_b32 v4, 0")
    a("ds_read_b32 v5, v4 offset:8224")
    a("s_cmp_ge_u32 s47, 8")
    a(f"s_cbranch_scc1 {L2}")
    a("s_lshl_b32 s49, s47, 2")
    a("v_mov_b32 v119, s49")
    a("ds_read_b32 v119, v119 offset:8192")
    a("s_waitcnt lgkmcnt(0)")
    a("v_add_u32 v117, v117, v119")
    a("v_sub_u32 v120, v117, v116")
    a("v_add_u32 v121, v120, v112")
    a("v_add_u32 v122, v121, v113")
    a("v_add_u32 v123, v122, v114")
    a("v_add_u32 v124, v123, v115")
    a("ds_write_b128 v1, v[120:123]")
    a("v_lshl_or_b32 v112, v121, 16, v120")
    a("v_lshl_or_b32 v113, v123, 16, v122")
    a("v_mov_b32 v114, v124")
    a("v_mov_b32 v115, 0")
    a("v_lshlrev_b32 v116, 12, v0")
    a("s_lshl_b32 s49, s2, 4")
    a("buffer_store_dwordx4 v[112:115], v116, s[28:31], s49 offen")
    for i in range(4):
        a(f"v_add_u32 v{116+i}, v{120+i}, v{108+i}")
        a(f"v_and_b32 v{108+i}, 1, v{108+i}")
    for i in range(4):
        a(f"v_lshlrev_b32 v{116+i}, 16, v{116+i}")
        a(f"v_cmp_eq_u32 vcc, 1, v{108+i}")
        a("s_nop 1")
        a(f"v_cndmask_b32 v{89+2*i}, v{89+2*i}, v{116+i}, vcc")
    a.label(L2)
    a("s_waitcnt lgkmcnt(0)")
    a("v_readfirstlane_b32 s49, v5")
    a("s_lshl_b32 s26, s49, 3")
    a("s_barrier")
    for half in range(2):
        recs = [(j, k) for j in range(5*half, 5*half + 5) for k in range(4)]
        for i, (j, k) in enumerate(recs):
            a(f"v_lshrrev_b32 v{108+i}, 16, v{R(j,2*k+1)}")
            a(f"ds_add_rtn_u32 v{108+i}, v{108+i}, v7")
        for i, (j, k) in enumerate(recs):
            if i % 4 == 0: a(f"s_waitcnt lgkmcnt({min(15, 16 - i if i <= 16 else 0)})" if False else f"s_waitcnt lgkmcnt({max(0, min(15, 20 - i - 4))})")
            a(f"v_mov_b32_sdwa v{R(j,2*k+1)}, v{108+i} dst_sel:WORD_1 dst_unused:UNUSED_PRESERVE src0_sel:WORD_0")
    a("s_mov_b32 s50, 0x40000000")
    a("v_add_u32 v3, 65536, v1")
    pairs = [R(j, 2*k) for j in range(10) for k in range(4)] + [88, 90, 92, 94]
    TMP = [96, 97, 98, 99]
    for r in range(3):
        for i, p in enumerate(pairs):
            t = TMP[i % 4]
            if r > 0: a(f"v_add_u32 v{p+1}, 0xc0000000, v{p+1}")
            a(f"v_cmpx_gt_u32 vcc, s50, v{p+1}")
            a(f"v_lshlrev_b32_sdwa v{t}, 3, v{p+1} dst_sel:DWORD dst_unused:UNUSED_PAD src0_sel:DWORD src1_sel:WORD_1")
            a(f"ds_write_b64 v{t}, v[{p}:{p+1}] offset:{WIN}")
            a("s_mov_b64 exec, -1")
        a("s_waitcnt lgkmcnt(0)")
        a("s_barrier")
        n = 8 if r < 2 else 5
        for jj in range(n):
            av = "v1" if jj < 4 else "v3"
            a(f"ds_read_b128 v[{96+4*jj}:{99+4*jj}], {av} offset:{WIN + (jj % 4)*16384}")
        for jj in range(n):
            a(f"s_waitcnt lgkmcnt({n-1-jj})")
            a(f"s_mov_b32 s49, {r*131072 + jj*16384}")
            a(f"buffer_store_dwordx4 v[{96+4*jj}:{99+4*jj}], v1, s[24:27], s49 offen")
        if r < 2:
            a("s_barrier")
            a("s_nop 1")
    a.label(END)
    a("s_endpgm")

def p1_desc():
    return f""".amdhsa_kernel {NAME}
  .amdhsa_next_free_vgpr 128
  .amdhsa_next_free_sgpr 64
  .amdhsa_accum_offset 128
  .amdhsa_group_segment_fixed_size 0
  .amdhsa_kernarg_size 112
  .amdhsa_user_sgpr_count 2
  .amdhsa_user_sgpr_kernarg_segment_ptr 1
  .amdhsa_system_sgpr_workgroup_id_x 1
.end_amdhsa_kernel
"""
```

```python
from asmlib import Asm
import p1

NAME = "consume_kernel"
NB = 500
STG = 0
CNT = 32768
LOOFF = 33280
HIOFF = 64000
P2_LDS = 79360
CSTRIDE = p1.CSTRIDE
SLICE_B = 81920 * 32
M_BYTES = 320000 * 32

V_TID = 0
V_E0, V_E1, V_E2 = 2, 3, 4
V_BASE = 1
V_BP = 5
V_LANE2 = 6
V_FOUR = 7
V_OWNLO = 8
V_OWNHI = 9
V_GMAP = 10
V_H16 = 11
V_TR0, V_TR1 = 12, 13
V_LTB = 14
V_OOB = 15
V_INIT = 16
V_CADDR = 17
V_EEFF = 18
V_CNTV = 19
T0 = 20
REC = 36
ACC = 68
def acc(t, l): return ACC + 12 * t + 4 * l

V_G0, V_G1 = 20, 21
V_OL, V_OA = 22, 23
V_LT = 24
V_M0_, V_M1_ = 25, 26
V_USED = 27
V_X = 28
V_A = 36
V_B = 44
V_EP, V_P0 = 56, 57
V_F = 60

S_M = 4
S_REC = 8
S_W, S_PH, S_MODE, S_K, S_WIN0, S_WIN32, S_MORE, S_OVF = 12, 13, 14, 15, 16, 17, 18, 19
S_MASK = 20
S_N4 = 36
S_NXT = 41
S_CUR, S_REM, S_NEXT, S_STG, S_T, S_T2 = 46, 47, 48, 49, 50, 51
S_FC, S_GM, S_PAR, S_TB = 52, 53, 54, 55
S_BKT = 56
S_WS = 58
S_TMP2 = 60
S_X = 62
INV2PI = "0.15915494"

def emit_setup(a):
    a(f"s_load_dwordx2 s[{S_M}:{S_M+1}], s[0:1], 0")
    a(f"s_load_dwordx2 s[{S_WS}:{S_WS+1}], s[0:1], 104")
    a(f"s_mov_b32 s{S_BKT}, s2")
    a(f"v_lshrrev_b32 v20, 6, v0")
    a(f"v_and_b32 v21, 63, v0")
    a(f"v_readfirstlane_b32 s{S_W}, v20")
    a(f"v_and_b32 v22, 15, v21")
    a(f"v_lshrrev_b32 v23, 4, v21")
    a("s_waitcnt lgkmcnt(0)")
    a(f"s_lshl_b32 s{S_T}, s2, 12")
    a(f"s_add_u32 s{S_T}, s{S_T}, {p1.TABOFF}")
    a(f"s_add_u32 s64, s{S_WS}, s{S_T}"); a(f"s_addc_u32 s65, s{S_WS+1}, 0"); a("s_mov_b32 s66, 4000"); a("s_mov_b32 s67, 0x00020000")
    a(f"v_mov_b32 v{V_OOB}, 0x80000000")
    a(f"s_lshl_b32 s{S_T}, s{S_W}, 5")
    a(f"v_add_u32 v24, s{S_T}, v21")
    a("v_lshlrev_b32 v24, 4, v24")
    a("v_cmp_gt_u32 vcc, 32, v21")
    a("s_nop 1")
    a(f"v_cndmask_b32 v24, v{V_OOB}, v24, vcc")
    a(f"buffer_load_dwordx3 v[{V_E0}:{V_E2}], v24, s[64:67], 0 offen")
    a(f"s_mov_b32 s{S_M+2}, {SLICE_B}"); a(f"s_mov_b32 s{S_M+3}, 0x00020000")
    a(f"s_mov_b32 s{S_REC}, s{S_WS}"); a(f"s_mov_b32 s{S_REC+1}, s{S_WS+1}")
    a(f"s_mov_b32 s{S_REC+2}, {250*CSTRIDE}"); a(f"s_mov_b32 s{S_REC+3}, 0x00020000")
    a(f"v_add_u32 v25, s{S_T}, v23")
    a(f"s_mov_b32 s{S_T2}, {CSTRIDE}")
    a(f"v_mul_lo_u32 v{V_BASE}, v25, s{S_T2}")
    a(f"v_lshlrev_b32 v{V_BP}, 2, v23")
    a(f"v_lshlrev_b32 v{V_LANE2}, 1, v22")
    a(f"v_mov_b32 v{V_FOUR}, 4")
    a("v_bfe_u32 v25, v21, 3, 1")
    a("v_and_b32 v26, 7, v21")
    a("v_lshlrev_b32 v25, 5, v25")
    a("v_lshl_add_u32 v25, v23, 3, v25")
    a("v_add_u32 v25, v25, v26")
    a(f"v_lshlrev_b32 v26, 2, v25"); a(f"v_add_u32 v{V_OWNLO}, {LOOFF}, v26")
    a(f"v_lshlrev_b32 v26, 1, v25"); a(f"v_add_u32 v{V_OWNHI}, {HIOFF}, v26")
    a("v_lshrrev_b32 v25, 1, v21")
    a("v_lshrrev_b32 v26, 3, v25")
    a("v_and_b32 v27, 1, v26"); a("v_lshlrev_b32 v27, 2, v27")
    a("v_add_u32 v27, v27, v25"); a("v_and_b32 v27, 7, v27")
    a("v_lshl_add_u32 v27, v26, 3, v27")
    a("v_lshlrev_b32 v27, 2, v27"); a(f"v_add_u32 v{V_GMAP}, {LOOFF}, v27")
    a(f"v_and_b32 v25, 1, v21"); a(f"v_lshlrev_b32 v{V_H16}, 4, v25")
    a("v_lshrrev_b32 v25, 2, v22")
    a("v_and_b32 v26, 1, v23"); a("v_lshlrev_b32 v26, 2, v26")
    a("v_add_u32 v25, v25, v26")
    a("v_lshl_add_u32 v25, v23, 3, v25")
    a("v_and_b32 v26, 3, v21")
    a("v_lshlrev_b32 v26, 3, v26")
    a("v_lshl_add_u32 v25, v25, 5, v26")
    a(f"s_lshl_b32 s{S_STG}, s{S_W}, 12")
    a(f"v_add_u32 v{V_TR0}, s{S_STG}, v25")
    a(f"v_xor_b32 v{V_TR1}, 128, v{V_TR0}")
    a(f"s_mul_i32 s{S_TB}, s{S_W}, 5")
    a(f"s_add_u32 s{S_TB}, s{S_TB}, 4")
    a(f"s_lshl_b32 s{S_T}, s{S_TB}, 4")
    a(f"v_add_u32 v25, s{S_T}, v22")
    a(f"v_lshl_or_b32 v{V_LTB}, v25, 16, v25")
    a("v_subrev_u32 v25, 4, v21")
    a("v_mul_u32_u24 v26, 768, v25")
    a(f"v_mov_b32 v{V_INIT}, 0x40000000")
    a("v_cmp_gt_u32 vcc, 40, v25")
    a("s_nop 1")
    a(f"v_cndmask_b32 v{V_INIT}, v{V_INIT}, v26, vcc")
    a("v_cmp_eq_u32 vcc, 56, v21")
    a("s_nop 1")
    a(f"v_cndmask_b32 v{V_INIT}, v{V_INIT}, 0, vcc") if False else None
    a("v_mov_b32 v26, 0")
    a(f"v_cndmask_b32 v{V_INIT}, v{V_INIT}, v26, vcc")
    a(f"v_lshlrev_b32 v{V_CADDR}, 2, v21")
    a(f"ds_write_b32 v{V_CADDR}, v{V_INIT} offset:{CNT}")
    a(f"ds_write_b32 v{V_CADDR}, v{V_INIT} offset:{CNT+256}")
    for i in range(60): a(f"v_mov_b32 v{ACC+i}, 0")
    a(f"s_mov_b32 s{S_FC}, 0xfc")
    a(f"s_mov_b32 s{S_GM}, 0x3fffe0")
    a(f"s_mov_b32 s{S_PAR}, 0")
    a(f"s_mov_b32 s{S_PH}, 0")
    a("s_waitcnt vmcnt(0) lgkmcnt(0)")
    a("s_barrier")

def emit_produce(a, par):
    cnt = CNT + 256 * par
    X = [T0 + i for i in range(8)]
    P = [T0 + 8 + i for i in range(8)]
    for i in range(8):
        a(f"ds_bpermute_b32 v{X[i]}, v{V_BP}, v{V_EEFF} offset:{16*i}")
    a(f"v_add_u32 v{REC}, s{S_WIN32}, v{V_LANE2}")
    a("s_waitcnt lgkmcnt(0)")
    for i in range(8):
        a(f"v_add_u32_sdwa v{P[i]}, v{X[i]}, v{REC} dst_sel:DWORD dst_unused:UNUSED_PAD src0_sel:WORD_0 src1_sel:DWORD")
    for i in range(8):
        a(f"v_cmp_lt_u32_sdwa s[{S_MASK+2*i}:{S_MASK+2*i+1}], v{P[i]}, v{X[i]} src0_sel:DWORD src1_sel:WORD_1")
    for i in range(8):
        a(f"v_lshl_add_u32 v{P[i]}, v{P[i]}, 3, v{V_BASE}")
    for i in range(8):
        a(f"v_cndmask_b32 v{P[i]}, v{V_OOB}, v{P[i]}, s[{S_MASK+2*i}:{S_MASK+2*i+1}]")
    for i in range(8):
        a(f"s_mov_b32 s{S_T}, {i*4*CSTRIDE}")
        a(f"buffer_load_dwordx4 v[{REC+4*i}:{REC+4*i+3}], v{P[i]}, s[{S_REC}:{S_REC+3}], s{S_T} offen")
    for h in range(2):
        a(f"s_waitcnt vmcnt({4 if h == 0 else 0})")
        for ii in range(4):
            i = 4 * h + ii
            a(f"s_mov_b64 exec, s[{S_MASK+2*i}:{S_MASK+2*i+1}]")
            for r in range(2):
                A = X[2*ii + r]
                a(f"v_and_b32_sdwa v{A}, s{S_FC}, v{REC+4*i+2*r} dst_sel:DWORD dst_unused:UNUSED_PAD src0_sel:DWORD src1_sel:BYTE_3")
                a(f"ds_add_rtn_u32 v{A}, v{A}, v{V_FOUR} offset:{cnt}")
        a("s_mov_b64 exec, -1")
        a("s_waitcnt lgkmcnt(0)")
        for ii in range(4):
            i = 4 * h + ii
            a(f"s_mov_b64 exec, s[{S_MASK+2*i}:{S_MASK+2*i+1}]")
            for r in range(2):
                A = X[2*ii + r]; A2 = P[2*ii + r]
                a(f"ds_write_b32 v{A}, v{REC+4*i+2*r} offset:{LOOFF}")
                a(f"v_lshrrev_b32 v{A2}, 1, v{A}")
                a(f"ds_write_b16 v{A2}, v{REC+4*i+2*r+1} offset:{HIOFF}")
        a("s_mov_b64 exec, -1")

def emit_f1(a):
    a(f"v_add_u32 v{V_G0}, s{S_NEXT}, v{V_GMAP}")
    a(f"v_add_u32 v{V_OL}, s{S_NEXT}, v{V_OWNLO}")
    a(f"s_lshr_b32 s{S_T}, s{S_NEXT}, 1")
    a(f"v_add_u32 v{V_OA}, s{S_T}, v{V_OWNHI}")
    a(f"ds_read2_b32 v[{V_G0}:{V_G1}], v{V_G0} offset0:0 offset1:32")
    a(f"ds_read_b32 v{V_OL}, v{V_OL}")
    a(f"ds_read_u16_d16_hi v{V_OA}, v{V_OA}")
    a(f"s_mov_b32 m0, s{S_STG}")
    a("s_waitcnt lgkmcnt(2)")
    a(f"v_and_or_b32 v{V_G0}, v{V_G0}, s{S_GM}, v{V_H16}")
    a(f"v_and_or_b32 v{V_G1}, v{V_G1}, s{S_GM}, v{V_H16}")
    a(f"buffer_load_dwordx4 v{V_G0}, s[{S_M}:{S_M+3}], 0 offen lds")
    a(f"s_add_u32 m0, s{S_STG}, 1024")
    a(f"s_xor_b32 s{S_STG}, s{S_STG}, 2048")
    a(f"buffer_load_dwordx4 v{V_G1}, s[{S_M}:{S_M+3}], 0 offen lds")

def emit_f2(a):
    F = V_F
    ang = V_OA; lo = V_OL
    a(f"v_mul_f32 v{F}, {INV2PI}, v{ang}")
    a(f"v_mul_f32 v{F+1}, 0x40400000, v{ang}")
    a(f"v_fract_f32 v{F}, v{F}")
    a(f"v_cvt_pk_bf16_f32 v{F+1}, 0, v{F+1}")
    a(f"v_cos_f32 v{F}, v{F}")
    a(f"v_mul_f32 v{F+1}, {INV2PI}, v{F+1}")
    a(f"v_lshrrev_b32 v{F+3}, 22, v{lo}")
    a(f"v_fract_f32 v{F+1}, v{F+1}")
    a(f"v_add_f32 v{F+2}, v{F}, v{F}")
    a(f"v_cos_f32 v{F+1}, v{F+1}")
    a(f"v_fma_f32 v{F+2}, v{F+2}, v{F}, -1.0")
    qp = "quad_perm:[1,1,3,3] row_mask:0xf bank_mask:0xf"
    a(f"v_mov_b32_dpp v{F+4}, v{F} {qp}")
    a(f"v_mov_b32_dpp v{F+7}, v{F+3} {qp}")
    a(f"v_mov_b32_dpp v{F+5}, v{F+1} {qp}")
    a(f"v_mov_b32_dpp v{F+6}, v{F+2} {qp}")
    a(f"v_cvt_pk_bf16_f32 v{V_P0}, v{F}, v{F+4}")
    a(f"v_lshl_or_b32 v{V_EP}, v{F+7}, 16, v{F+3}")
    a(f"v_cvt_pk_bf16_f32 v{V_P0+2}, v{F+1}, v{F+5}")
    a(f"v_cvt_pk_bf16_f32 v{V_P0+1}, v{F+2}, v{F+6}")

def emit_bgroup(a, t, grp):
    i0 = 8 * grp
    for p in range(4):
        bc = f"row_newbcast:{i0+2*p} row_mask:0xf bank_mask:0xf"
        m = V_M0_ + (p & 1)
        a(f"v_xor_b32_dpp v{m}, v{V_EP}, v{V_LT} {bc}")
        a(f"v_pk_add_u16 v{m}, v{m}, -1")
        a(f"v_pk_ashrrev_i16 v{m}, 15, v{m} op_sel_hi:[0,1]")
        for l in range(3):
            a(f"v_and_b32_dpp v{V_B+4*l+p}, v{V_P0+l}, v{m} {bc}")

def emit_mfma(a, t, grp):
    for l in range(3):
        c = acc(t, l)
        a(f"v_mfma_f32_16x16x32_bf16 v[{c}:{c+3}], v[{V_A+4*grp}:{V_A+4*grp+3}], v[{V_B+4*l}:{V_B+4*l+3}], v[{c}:{c+3}]")

def emit_consume(a):
    DONE = a.newlabel("cdone")
    for t in range(5):
        a(f"s_add_u32 s{S_T}, s{S_TB}, {t}")
        a(f"v_readlane_b32 s{S_N4+t}, v{V_USED}, s{S_T}")
    a(f"s_sub_u32 s{S_T2}, s{S_TB}, 4")
    a(f"s_mul_i32 s{S_T2}, s{S_T2}, 768")
    a(f"v_lshrrev_b32 v{V_X}, 0, v{V_CADDR}")
    a(f"v_and_b32 v{V_X}, 0xff, v{V_CADDR}")
    a(f"v_mov_b32 v{V_X+1}, -1")
    for t in range(5):
        a(f"s_add_u32 s{S_T}, s{S_N4+t}, 255")
        a(f"s_andn2_b32 s{S_T}, s{S_T}, 255")
        a(f"v_add_u32 v{V_X+2}, s{S_N4+t}, v{V_X}")
        a(f"v_cmpx_gt_u32 vcc, s{S_T}, v{V_X+2}")
        a(f"s_add_u32 s{S_T}, s{S_T2}, {t*768}")
        a(f"v_add_u32 v{V_X+2}, s{S_T}, v{V_X+2}")
        a(f"ds_write_b32 v{V_X+2}, v{V_X+1} offset:{LOOFF}")
        a("s_mov_b64 exec, -1")
    a(f"s_mov_b32 s{S_NXT+4}, -1")
    for t in range(3, -1, -1):
        a(f"s_add_u32 s{S_T}, s{S_T2}, {(t+1)*768}")
        a(f"s_cmp_gt_u32 s{S_N4+t+1}, 0")
        a(f"s_cselect_b32 s{S_NXT+t}, s{S_T}, s{S_NXT+t+1}")
    a(f"s_cmp_gt_u32 s{S_N4}, 0")
    a(f"s_cselect_b32 s{S_NEXT}, s{S_T2}, s{S_NXT}")
    a(f"s_cmp_eq_u32 s{S_NEXT}, -1")
    a(f"s_cbranch_scc1 {DONE}")
    emit_f1(a)
    a("s_waitcnt lgkmcnt(0)")
    emit_f2(a)
    for t in range(5):
        SKIP = a.newlabel("tskip"); LOOP = a.newlabel("tloop"); NONE = a.newlabel("tnone"); LB = a.newlabel("tb"); NOB = a.newlabel("tnob"); NOF2 = a.newlabel("tnof2")
        a(f"s_cmp_eq_u32 s{S_N4+t}, 0")
        a(f"s_cbranch_scc1 {SKIP}")
        a(f"v_add_u32 v{V_LT}, {t*0x00100010}, v{V_LTB}")
        a(f"s_mov_b32 s{S_REM}, s{S_N4+t}")
        a.label(LOOP)
        a(f"s_add_u32 s{S_T}, s{S_NEXT}, 256")
        a(f"s_cmp_gt_u32 s{S_REM}, 256")
        a(f"s_cselect_b32 s{S_NEXT}, s{S_T}, s{S_NXT+t}")
        a(f"s_cmp_eq_u32 s{S_NEXT}, -1")
        a(f"s_cbranch_scc1 {NONE}")
        emit_f1(a)
        a("s_waitcnt vmcnt(2)")
        a(f"s_branch {LB}")
        a.label(NONE)
        a("s_waitcnt vmcnt(0)")
        a.label(LB)
        a(f"ds_read_b64_tr_b16 v[{V_A}:{V_A+1}], v{V_TR0}")
        a(f"ds_read_b64_tr_b16 v[{V_A+2}:{V_A+3}], v{V_TR1}")
        a(f"ds_read_b64_tr_b16 v[{V_A+4}:{V_A+5}], v{V_TR0} offset:1024")
        a(f"ds_read_b64_tr_b16 v[{V_A+6}:{V_A+7}], v{V_TR1} offset:1024")
        emit_bgroup(a, t, 0)
        a(f"v_xor_b32 v{V_TR0}, 2048, v{V_TR0}")
        a(f"v_xor_b32 v{V_TR1}, 2048, v{V_TR1}")
        a("s_waitcnt lgkmcnt(2)")
        emit_mfma(a, t, 0)
        a(f"s_cmp_gt_u32 s{S_REM}, 128")
        a(f"s_cbranch_scc0 {NOB}")
        emit_bgroup(a, t, 1)
        a("s_waitcnt lgkmcnt(0)")
        a("s_nop 0")
        emit_mfma(a, t, 1)
        a.label(NOB)
        a("s_waitcnt lgkmcnt(0)")
        a(f"s_cmp_eq_u32 s{S_NEXT}, -1")
        a(f"s_cbranch_scc1 {NOF2}")
        emit_f2(a)
        a.label(NOF2)
        a(f"s_sub_u32 s{S_REM}, s{S_REM}, 256")
        a(f"s_cmp_gt_i32 s{S_REM}, 0")
        a(f"s_cbranch_scc1 {LOOP}")
        a.label(SKIP)
    a.label(DONE)

def emit_dbg_s(a):
    a(f"s_add_u32 s64, s{S_WS}, 0x6000000"); a(f"s_addc_u32 s65, s{S_WS+1}, 0"); a("s_mov_b32 s66, 61440000"); a("s_mov_b32 s67, 0x00020000")
    a(f"v_and_b32 v21, 63, v0"); a(f"v_and_b32 v22, 15, v21"); a(f"v_lshrrev_b32 v23, 4, v21")
    a(f"s_mul_i32 s{S_T}, s{S_BKT}, 640"); a(f"s_mul_i32 s{S_T2}, s{S_W}, 80"); a(f"s_add_u32 s{S_T}, s{S_T}, s{S_T2}")
    a(f"v_add_u32 v28, s{S_T}, v22")
    a(f"v_mul_u32_u24 v28, 192, v28"); a("v_lshl_add_u32 v28, v23, 4, v28")
    for t in range(5):
        for l in range(3):
            a(f"s_mov_b32 s{S_T}, {t*16*192 + l*64}")
            a(f"buffer_store_dwordx4 v[{acc(t,l)}:{acc(t,l)+3}], v28, s[64:67], s{S_T} offen")
    a("s_waitcnt vmcnt(0)")

def emit_epilogue(a):
    a("s_load_dwordx2 s[20:21], s[0:1], 72")
    a("s_load_dwordx2 s[24:25], s[0:1], 80")
    a("s_load_dwordx2 s[28:29], s[0:1], 56")
    a("s_load_dwordx2 s[32:33], s[0:1], 64")
    a("s_load_dwordx2 s[36:37], s[0:1], 24")
    a("s_load_dwordx2 s[40:41], s[0:1], 40")
    a("s_load_dwordx2 s[44:45], s[0:1], 88")
    a("s_load_dwordx2 s[64:65], s[0:1], 0")
    for base, size in ((20, 512), (24, 512), (28, 256), (32, 768), (36, 640000), (40, 16), (44, M_BYTES), (64, M_BYTES)):
        a(f"s_mov_b32 s{base+2}, {size}"); a(f"s_mov_b32 s{base+3}, 0x00020000")
    a(f"v_and_b32 v21, 63, v0")
    a(f"v_and_b32 v22, 15, v21")
    a(f"v_lshrrev_b32 v23, 4, v21")
    a(f"v_lshlrev_b32 v24, 4, v21")
    a(f"s_lshl_b32 s{S_STG}, s{S_W}, 12")
    a("s_waitcnt lgkmcnt(0)")
    for k, base in enumerate((20, 24, 28, 32)):
        a(f"s_add_u32 m0, s{S_STG}, {1024*k}")
        a("s_nop 0")
        a(f"buffer_load_dwordx4 v24, s[{base}:{base+3}], 0 offen lds")
    a("v_and_b32 v25, 1, v23"); a("v_lshlrev_b32 v25, 3, v25")
    a("buffer_load_dwordx2 v[26:27], v25, s[40:43], 0 offen")
    a(f"s_mul_i32 s{S_T}, s{S_BKT}, 640")
    a(f"s_mul_i32 s{S_T2}, s{S_W}, 80")
    a(f"s_add_u32 s{S_T}, s{S_T}, s{S_T2}")
    a(f"v_add_u32 v28, s{S_T}, v22")
    a("v_lshlrev_b32 v29, 1, v28")
    a("v_lshlrev_b32 v30, 5, v28")
    a("v_lshl_add_u32 v30, v23, 3, v30")
    for t in range(5):
        a(f"buffer_load_ushort v{31+t}, v29, s[36:39], 0 offen offset:{32*t}")
        a(f"buffer_load_dwordx2 v[{36+2*t}:{37+2*t}], v30, s[64:67], 0 offen offset:{512*t}")
    a(f"v_lshlrev_b32 v25, 3, v21"); a(f"v_add_u32 v25, s{S_STG}, v25")
    a("v_lshrrev_b32 v46, 2, v21")
    a("v_mul_u32_u24 v46, 96, v46")
    a("v_and_b32 v47, 3, v21"); a("v_lshl_add_u32 v46, v47, 3, v46")
    a("v_min_u32 v46, 832, v46")
    a(f"v_add_u32 v46, s{S_STG}, v46")
    a("s_waitcnt vmcnt(0)")
    WD, WU, WR, WS = 48, 50, 52, 54
    a(f"ds_read_b64_tr_b16 v[{WD}:{WD+1}], v25")
    a(f"ds_read_b64_tr_b16 v[{WU}:{WU+1}], v25 offset:1024")
    a(f"ds_read_b64_tr_b16 v[{WR}:{WR+1}], v25 offset:2048")
    for l in range(3):
        a(f"ds_read_b64_tr_b16 v[{WS+2*l}:{WS+2*l+1}], v46 offset:{3072+32*l}")
    a("v_lshlrev_b32 v60, 16, v26"); a("v_and_b32 v61, 0xffff0000, v26")
    a("v_lshlrev_b32 v62, 16, v27"); a("v_and_b32 v63, 0xffff0000, v27")
    a("s_mov_b32 s62, 0xc1200000")
    a("s_mov_b32 s63, 0x3fb8aa3b")
    a("v_cmp_gt_u32 s[60:61], 2, v23")
    a("s_waitcnt lgkmcnt(0)")
    for t in range(5):
        d = 31 + t; mm = 36 + 2 * t
        R = 20
        R = 64
        a(f"v_lshlrev_b32 v{d}, 16, v{d}")
        for i in range(4): a(f"v_sub_f32 v{R+i}, v{d}, v{60+i}")
        for i in range(4): a(f"v_cvt_pk_bf16_f32 v{R+i}, 0, v{R+i}")
        for i in range(4): a(f"v_mul_f32 v{R+i}, v{R+i}, v{R+i}")
        for i in range(4): a(f"v_cvt_pk_bf16_f32 v{R+i}, 0, v{R+i}")
        for i in range(4): a(f"v_mul_f32 v{R+i}, s62, v{R+i}")
        for i in range(4): a(f"v_cvt_pk_bf16_f32 v{R+i}, 0, v{R+i}")
        for i in range(4): a(f"v_mul_f32 v{R+i}, s63, v{R+i}")
        for i in range(4): a(f"v_exp_f32 v{R+i}, v{R+i}")
        a("s_nop 0")
        RB = 46
        a(f"v_cvt_pk_bf16_f32 v{RB}, v{R}, v{R+1}")
        a(f"v_cvt_pk_bf16_f32 v{RB+1}, v{R+2}, v{R+3}")
        a(f"v_cndmask_b32 v{RB}, 0, v{RB}, s[60:61]")
        a(f"v_cndmask_b32 v{RB+1}, 0, v{RB+1}, s[60:61]")
        for l in range(3):
            c = acc(t, l)
            a(f"v_cvt_pk_bf16_f32 v{c}, v{c}, v{c+1}")
            a(f"v_cvt_pk_bf16_f32 v{c+1}, v{c+2}, v{c+3}")
        U = [4, 8, 12]; W = [16, 24, 64]; G = 20
        a("s_nop 1")
        for l in range(3):
            c = acc(t, l)
            a(f"v_mfma_f32_16x16x16_bf16 v[{U[l]}:{U[l]+3}], v[{WD}:{WD+1}], v[{c}:{c+1}], 0")
        for l in range(3):
            a(f"v_mfma_f32_16x16x16_bf16 v[{W[l]}:{W[l]+3}], v[{WS+2*l}:{WS+2*l+1}], v[{RB}:{RB+1}], 0")
        c = acc(t, 0)
        GG = acc(t, 1)
        a(f"v_mfma_f32_16x16x16_bf16 v[{GG}:{GG+3}], v[{WR}:{WR+1}], v[{RB}:{RB+1}], 0")
        a("s_nop 7")
        for r in range(4):
            a(f"v_mul_f32 v{U[0]+r}, v{U[0]+r}, v{W[0]+r}")
        for r in range(4):
            a(f"v_fma_f32 v{U[0]+r}, v{U[1]+r}, v{W[1]+r}, v{U[0]+r}")
        for r in range(4):
            a(f"v_fma_f32 v{U[0]+r}, v{U[2]+r}, v{W[2]+r}, v{U[0]+r}")
        a(f"v_cvt_pk_bf16_f32 v{U[1]}, v{U[0]}, v{U[0]+1}")
        a(f"v_cvt_pk_bf16_f32 v{U[1]+1}, v{U[0]+2}, v{U[0]+3}")
        a("s_nop 1")
        VV = U[2]
        a(f"v_mfma_f32_16x16x16_bf16 v[{VV}:{VV+3}], v[{WU}:{WU+1}], v[{U[1]}:{U[1]+1}], 0")
        for r in range(4): a(f"v_cvt_pk_bf16_f32 v{GG+r}, 0, v{GG+r}")
        a(f"v_lshlrev_b32 v{W[0]}, 16, v{mm}"); a(f"v_and_b32 v{W[0]+1}, 0xffff0000, v{mm}")
        a(f"v_lshlrev_b32 v{W[0]+2}, 16, v{mm+1}"); a(f"v_and_b32 v{W[0]+3}, 0xffff0000, v{mm+1}")
        a("s_nop 1")
        for r in range(4): a(f"v_cvt_pk_bf16_f32 v{VV+r}, 0, v{VV+r}")
        for r in range(4): a(f"v_mul_f32 v{VV+r}, v{VV+r}, v{GG+r}")
        for r in range(4): a(f"v_cvt_pk_bf16_f32 v{VV+r}, 0, v{VV+r}")
        for r in range(4): a(f"v_add_f32 v{VV+r}, v{VV+r}, v{W[0]+r}")
        a(f"v_cvt_pk_bf16_f32 v{mm}, v{VV}, v{VV+1}")
        a(f"v_cvt_pk_bf16_f32 v{mm+1}, v{VV+2}, v{VV+3}")
        a(f"buffer_store_dwordx2 v[{mm}:{mm+1}], v30, s[44:47], 0 offen offset:{512*t}")

def gen_p2(a, opt=None):
    opt = opt or {}
    a.label(NAME)
    END = "L_p2_end"
    a(f"s_cmp_ge_u32 s2, {NB}")
    a(f"s_cbranch_scc1 {END}")
    emit_setup(a)
    PHASE = "L_p2_phase"; ROUND = "L_p2_round"; WLOOP = "L_p2_wloop"; PAR1 = "L_p2_par1"; PDONE = "L_p2_pdone"
    GATE = "L_p2_gate"; GATED = "L_p2_gated"; NOMORE = "L_p2_nomore"; SKIPC = "L_p2_skipc"; SLOW = "L_p2_slow"; PHDONE = "L_p2_phdone"; NEXTK = "L_p2_nextk"
    a.label(PHASE)
    a(f"s_mov_b32 s{S_MODE}, 0"); a(f"s_mov_b32 s{S_K}, 0"); a(f"s_mov_b32 s{S_WIN0}, 0")
    a.label(ROUND)
    a(f"v_mov_b32 v{V_EEFF}, v{V_E0}")
    a(f"s_cmp_eq_u32 s{S_MODE}, 0")
    a(f"s_cbranch_scc1 {GATED}")
    a(f"s_lshr_b32 s{S_T}, s{S_K}, 3")
    a(f"s_and_b32 s{S_T2}, s{S_K}, 7")
    a(f"s_lshl_b32 s{S_T2}, s{S_T2}, 2")
    a(f"s_lshl_b32 s{S_T2}, 15, s{S_T2}")
    a(f"s_cmp_eq_u32 s{S_T}, s{S_W}")
    a(f"s_cselect_b32 s{S_TMP2}, s{S_T2}, 0")
    a(f"s_mov_b32 s{S_TMP2+1}, 0")
    a(f"v_cndmask_b32 v{V_EEFF}, 0, v{V_E0}, s[{S_TMP2}:{S_TMP2+1}]")
    a.label(GATED)
    a(f"v_sub_u32_sdwa v{V_CNTV}, v{V_EEFF}, v{V_EEFF} dst_sel:DWORD dst_unused:UNUSED_PAD src0_sel:WORD_1 src1_sel:WORD_0")
    a(f"s_lshl_b32 s{S_WIN32}, s{S_WIN0}, 5")
    a.label(WLOOP)
    a(f"s_cmp_eq_u32 s{S_PAR}, 0")
    a(f"s_cbranch_scc0 {PAR1}")
    emit_produce(a, 0)
    a(f"s_branch {PDONE}")
    a.label(PAR1)
    emit_produce(a, 1)
    a.label(PDONE)
    a(f"s_add_u32 s{S_WIN32}, s{S_WIN32}, 32")
    a(f"v_cmp_lt_u32 vcc, s{S_WIN32}, v{V_CNTV}")
    a(f"s_cbranch_vccz {NOMORE}")
    a(f"s_cmp_eq_u32 s{S_MODE}, 0")
    a(f"s_cbranch_scc1 {WLOOP}")
    a(f"v_mov_b32 v20, s{S_PAR}"); a("v_mov_b32 v21, 1")
    a(f"ds_write_b32 v20, v21 offset:{CNT + 56*4}")
    a.label(NOMORE)
    a("s_waitcnt lgkmcnt(0)")
    a("s_barrier")
    a(f"ds_read_b32 v{V_USED}, v{V_CADDR} offset:{CNT}")
    a(f"v_xor_b32 v{V_CADDR}, 256, v{V_CADDR}")
    a(f"s_xor_b32 s{S_PAR}, s{S_PAR}, 256")
    a(f"ds_write_b32 v{V_CADDR}, v{V_INIT} offset:{CNT}")
    a("s_waitcnt lgkmcnt(1)")
    a(f"v_readlane_b32 s{S_MORE}, v{V_USED}, 56")
    a(f"v_sub_u32 v{V_USED}, v{V_USED}, v{V_INIT}")
    a(f"v_cmp_lt_u32 vcc, 768, v{V_USED}") if False else None
    a(f"s_movk_i32 s{S_T}, 768")
    a(f"v_cmp_lt_u32 vcc, s{S_T}, v{V_USED}")
    a(f"s_mov_b32 s{S_TMP2}, 0xfffffff0"); a(f"s_mov_b32 s{S_TMP2+1}, 0xfff")
    a(f"s_and_b64 s[{S_TMP2}:{S_TMP2+1}], s[{S_TMP2}:{S_TMP2+1}], vcc")
    a(f"s_cselect_b32 s{S_OVF}, 1, 0")
    a(f"s_cbranch_scc1 {SKIPC}")
    emit_consume(a)
    a.label(SKIPC)
    a("s_waitcnt lgkmcnt(0)")
    a("s_barrier")
    a(f"s_cmp_eq_u32 s{S_OVF}, 0")
    a(f"s_cbranch_scc1 {SLOW}")
    a(f"s_mov_b32 s{S_MODE}, 1"); a(f"s_mov_b32 s{S_K}, 0"); a(f"s_mov_b32 s{S_WIN0}, 0")
    a(f"s_branch {ROUND}")
    a.label(SLOW)
    a(f"s_cmp_eq_u32 s{S_MODE}, 0")
    a(f"s_cbranch_scc1 {PHDONE}")
    a(f"s_cmp_eq_u32 s{S_MORE}, 0")
    a(f"s_cbranch_scc1 {NEXTK}")
    a(f"s_add_u32 s{S_WIN0}, s{S_WIN0}, 1")
    a(f"s_branch {ROUND}")
    a.label(NEXTK)
    a(f"s_mov_b32 s{S_WIN0}, 0")
    a(f"s_add_u32 s{S_K}, s{S_K}, 1")
    a(f"s_cmp_lt_u32 s{S_K}, 64")
    a(f"s_cbranch_scc1 {ROUND}")
    a.label(PHDONE)
    a(f"v_alignbit_b32 v{V_E0}, v{V_E1}, v{V_E0}, 16")
    a(f"v_alignbit_b32 v{V_E1}, v{V_E2}, v{V_E1}, 16")
    a(f"v_lshrrev_b32 v{V_E2}, 16, v{V_E2}")
    a(f"s_add_u32 s{S_M}, s{S_M}, {SLICE_B}"); a(f"s_addc_u32 s{S_M+1}, s{S_M+1}, 0")
    a(f"s_add_u32 s{S_PH}, s{S_PH}, 1")
    a(f"s_cmp_eq_u32 s{S_PH}, 3")
    a(f"s_cselect_b32 s{S_M+2}, {M_BYTES - 3*SLICE_B}, s{S_M+2}")
    a(f"s_cmp_lt_u32 s{S_PH}, 4")
    a(f"s_cbranch_scc1 {PHASE}")
    if opt.get('dbg_s'): emit_dbg_s(a)
    emit_epilogue(a)
    a.label(END)
    a("s_endpgm")

def p2_desc(opt=None):
    return f""".amdhsa_kernel {NAME}
  .amdhsa_next_free_vgpr 128
  .amdhsa_next_free_sgpr 80
  .amdhsa_accum_offset 128
  .amdhsa_group_segment_fixed_size 0
  .amdhsa_kernarg_size 112
  .amdhsa_user_sgpr_count 2
  .amdhsa_user_sgpr_kernarg_segment_ptr 1
  .amdhsa_system_sgpr_workgroup_id_x 1
.end_amdhsa_kernel
"""
```

```python
import sys, os
sys.path.insert(0, os.path.dirname(__file__))
from asmlib import Asm, check
import p1
try:
    import p2
except ImportError:
    p2 = None

HEADER = open(os.path.join(os.path.dirname(__file__), "..", "cdna_kernels", "gather_scatter__molecular_angular_gemnet__graph.s.ref")).read().split("; Override launch geometry")[0]

def build(out, only_p1=False, opt=None):
    opt = opt or {}
    kernels = []
    a1 = Asm(); p1.gen_p1(a1, opt); kernels.append((p1.NAME, a1, p1.p1_desc(), f"; @launch kernel={p1.NAME} grid=({p1.NCHUNK},1,1) block=(1024,1,1) lds={p1.P1_LDS}"))
    if p2 is not None and not only_p1:
        a2 = Asm(); p2.gen_p2(a2, opt); kernels.append((p2.NAME, a2, p2.p2_desc(opt), f"; @launch kernel={p2.NAME} grid=(500,1,1) block=(512,1,1) lds={p2.P2_LDS}"))
    s = HEADER
    for k in kernels: s += k[3] + "\n"
    s += '.amdgcn_target "amdgcn-amd-amdhsa--gfx950"\n.text\n'
    nprob = 0
    for name, a, desc, _ in kernels:
        pr = check(a.lines, name)
        for p in pr[:8]: print(p)
        nprob += len(pr)
        s += f".globl {name}\n.p2align 8\n.type {name},@function\n" + a.text()
    s += '.section .rodata,"a"\n'
    for name, a, desc, _ in kernels:
        s += ".p2align 6\n" + desc
    open(out, "w").write(s)
    print("wrote", out, len(s), "bytes; hazard problems:", nprob)

if __name__ == "__main__":
    out = sys.argv[1] if len(sys.argv) > 1 else "gather_scatter__molecular_angular_gemnet__graph.s"
    opt = {}
    for x in sys.argv[2:]:
        k, _, v = x.partition("=")
        opt[k] = int(v) if v.lstrip("-").isdigit() else v
    build(out, only_p1=opt.get("only_p1", False), opt=opt)
```

```python
from asmlib import Asm

NCHUNK = 250
CH = 40960
NSL = 5
SROWS = 64000
CSTRIDE = 348160
TABOFF = 0x5400000
TABSIZE = 500 * 8192
SCR = 10240
WIN = 10496
ENT = WIN + 131072
P1_LDS = ENT + 10240
NAME = "partition_kernel"

def gen_p1(a: Asm, opt=None):
    opt = opt or {}
    a.label(NAME)
    END = "L_p1_end"
    a(f"s_cmp_ge_u32 s2, {NCHUNK}")
    a(f"s_cbranch_scc1 {END}")
    a("s_load_dwordx4 s[4:7], s[0:1], 8")
    a("s_load_dwordx2 s[8:9], s[0:1], 32")
    a("s_load_dwordx2 s[10:11], s[0:1], 104")
    a("v_lshlrev_b32 v1, 4, v0")
    a("v_lshlrev_b32 v2, 3, v0")
    a("s_mul_i32 s32, s2, 163840")
    a("s_mul_i32 s33, s2, 81920")
    a(f"s_mul_i32 s34, s2, {CSTRIDE}")
    a("s_waitcnt lgkmcnt(0)")
    a("s_add_u32 s12, s4, s32"); a("s_addc_u32 s13, s5, 0"); a("s_mov_b32 s14, 163840"); a("s_mov_b32 s15, 0x00020000")
    a("s_add_u32 s16, s6, s32"); a("s_addc_u32 s17, s7, 0"); a("s_mov_b32 s18, 163840"); a("s_mov_b32 s19, 0x00020000")
    a("s_add_u32 s20, s8, s33"); a("s_addc_u32 s21, s9, 0"); a("s_mov_b32 s22, 81920"); a("s_mov_b32 s23, 0x00020000")
    def R(j, k): return 8 + 8 * j + k
    def ANG(j): return 88 + 2 * j
    for j in range(10):
        a(f"s_mov_b32 s36, {j*16384}")
        a(f"s_mov_b32 s37, {j*8192}")
        a(f"buffer_load_dwordx4 v[{R(j,0)}:{R(j,3)}], v1, s[16:19], s36 offen nt")
        a(f"buffer_load_dwordx4 v[{R(j,4)}:{R(j,7)}], v1, s[12:15], s36 offen nt")
        a(f"buffer_load_dwordx2 v[{ANG(j)}:{ANG(j)+1}], v2, s[20:23], s37 offen nt")
    a("s_add_u32 s24, s10, s34"); a("s_addc_u32 s25, s11, 0"); a(f"s_mov_b32 s26, {CSTRIDE}"); a("s_mov_b32 s27, 0x00020000")
    a(f"s_add_u32 s28, s10, {TABOFF}"); a("s_addc_u32 s29, s11, 0"); a(f"s_mov_b32 s30, {TABSIZE}"); a("s_mov_b32 s31, 0x00020000")
    a("v_mov_b32 v4, 0"); a("v_mov_b32 v5, 0")
    a("ds_write_b64 v2, v[4:5]")
    a("ds_write_b64 v2, v[4:5] offset:8192")
    a("v_and_b32 v3, 63, v0")
    a("v_lshlrev_b32 v6, 2, v3")
    a("s_mov_b32 s40, 6710887")
    a("s_mov_b32 s41, 67109")
    a("s_mov_b32 s42, -640")
    a("s_mov_b32 s43, -64000")
    a(f"s_mov_b32 s44, {64<<22}")
    a("s_mov_b32 s45, 0x05040100")
    a("s_mov_b32 s46, 0x05040302")
    a("v_mov_b32 v2, 1")
    a("v_lshrrev_b32 v4, 6, v0")
    a("s_nop 0")
    a("v_readfirstlane_b32 s47, v4")
    a("s_waitcnt lgkmcnt(0)")
    a("s_barrier")
    B = [108 + k for k in range(4)]; S = [112 + k for k in range(4)]
    E = [116 + k for k in range(4)]; RW = [120 + k for k in range(4)]
    for j in range(10):
        a(f"s_waitcnt vmcnt({27 - 3*j})")
        X = [R(j, k) for k in range(4)]; Y = [R(j, 4 + k) for k in range(4)]
        for k in range(4): a(f"v_mul_hi_u32 v{B[k]}, v{X[k]}, s40")
        for k in range(4): a(f"v_mul_hi_u32 v{S[k]}, v{Y[k]}, s41")
        for k in range(4): a(f"v_mad_i32_i24 v{E[k]}, v{B[k]}, s42, v{X[k]}")
        for k in range(4): a(f"v_mad_i32_i24 v{RW[k]}, v{S[k]}, s43, v{Y[k]}")
        for k in range(4): a(f"v_lshl_add_u32 v{B[k]}, v{S[k]}, 9, v{B[k]}")
        for k in range(4): a(f"v_lshlrev_b32 v{B[k]}, 2, v{B[k]}")
        for k in range(4): a(f"ds_add_u32 v{B[k]}, v2")
        for k in range(4): a(f"v_lshl_add_u32 v{RW[k]}, v{RW[k]}, 5, s44")
        for k in range(4): a(f"v_lshl_add_u32 v{R(j,2*k)}, v{E[k]}, 22, v{RW[k]}")
        for k in range(4): a(f"v_perm_b32 v{R(j,2*k+1)}, v{B[k]}, v{ANG(j) + (k>>1)}, {'s45' if k%2==0 else 's46'}")
    a("s_waitcnt lgkmcnt(0)")
    a("s_barrier")
    L1 = "L_p1_noscan1"
    for i in range(4):
        a(f"v_mov_b32 v{88+2*i}, 0")
        a(f"v_mov_b32 v{89+2*i}, 0xffff0000")
    a("s_cmp_ge_u32 s47, 8")
    a(f"s_cbranch_scc1 {L1}")
    a("v_mul_u32_u24 v107, 20, v0")
    a("ds_read2_b32 v[108:109], v107 offset0:0 offset1:1")
    a("ds_read2_b32 v[110:111], v107 offset0:2 offset1:3")
    a("ds_read_b32 v98, v107 offset:16")
    a("s_waitcnt lgkmcnt(0)")
    for i in range(4): a(f"v_add_u32 v{112+i}, 1, v{108+i}")
    a("v_add_u32 v99, 1, v98")
    for i in range(4): a(f"v_and_b32 v{112+i}, -2, v{112+i}")
    a("v_and_b32 v99, -2, v99")
    a("v_add_u32 v116, v112, v113"); a("v_add_u32 v117, v114, v115"); a("v_add_u32 v116, v116, v117")
    a("v_add_u32 v116, v116, v99")
    a("v_mov_b32 v117, v116")
    a("s_nop 1")
    for sh in (1, 2, 4, 8):
        a(f"v_add_u32_dpp v117, v117, v117 row_shr:{sh} row_mask:0xf bank_mask:0xf bound_ctrl:0")
        a("s_nop 1")
    a("v_add_u32_dpp v117, v117, v117 row_bcast:15 row_mask:0xa bank_mask:0xf")
    a("s_nop 1")
    a("v_add_u32_dpp v117, v117, v117 row_bcast:31 row_mask:0xc bank_mask:0xf")
    a("s_nop 1")
    a("v_readlane_b32 s48, v117, 63")
    a("s_add_u32 s49, s47, 1")
    a("s_lshl_b32 s50, -1, s49")
    a("s_and_b32 s50, s50, 0x1ff")
    a("v_mov_b32 v118, s48")
    a("s_mov_b32 exec_lo, s50"); a("s_mov_b32 exec_hi, 0")
    a(f"ds_add_u32 v6, v118 offset:{SCR}")
    a("s_mov_b64 exec, -1")
    a.label(L1)
    a("s_waitcnt lgkmcnt(0)")
    a("s_barrier")
    L2 = "L_p1_noscan2"
    a("v_mov_b32 v4, 0")
    a("v_mov_b32 v6, 0"); a("v_mov_b32 v7, 0xffff0000")
    a(f"ds_read_b32 v5, v4 offset:{SCR+32}")
    a("s_cmp_ge_u32 s47, 8")
    a(f"s_cbranch_scc1 {L2}")
    a("s_lshl_b32 s49, s47, 2")
    a("v_mov_b32 v119, s49")
    a(f"ds_read_b32 v119, v119 offset:{SCR}")
    a("s_waitcnt lgkmcnt(0)")
    a("v_add_u32 v117, v117, v119")
    a("v_sub_u32 v120, v117, v116")
    a("v_add_u32 v121, v120, v112")
    a("v_add_u32 v122, v121, v113")
    a("v_add_u32 v123, v122, v114")
    a("v_add_u32 v124, v123, v115")
    a("v_add_u32 v125, v124, v99")
    a("ds_write2_b32 v107, v120, v121 offset0:0 offset1:1")
    a("ds_write2_b32 v107, v122, v123 offset0:2 offset1:3")
    a("ds_write_b32 v107, v124 offset:16")
    for i in range(5): a(f"v_lshl_or_b32 v{112+i}, v{121+i}, 16, v{120+i}")
    a(f"v_add_u32 v107, {ENT}, v107")
    a("ds_write2_b32 v107, v112, v113 offset0:0 offset1:1")
    a("ds_write2_b32 v107, v114, v115 offset0:2 offset1:3")
    a("ds_write_b32 v107, v116 offset:16")
    for i in range(4):
        a(f"v_add_u32 v{116+i}, v{120+i}, v{108+i}")
        a(f"v_and_b32 v{108+i}, 1, v{108+i}")
    for i in range(4):
        a(f"v_lshlrev_b32 v{116+i}, 16, v{116+i}")
        a(f"v_cmp_eq_u32 vcc, 1, v{108+i}")
        a("s_nop 1")
        a(f"v_cndmask_b32 v{89+2*i}, v{89+2*i}, v{116+i}, vcc")
    a("v_add_u32 v116, v124, v98"); a("v_and_b32 v98, 1, v98"); a("v_lshlrev_b32 v116, 16, v116")
    a("v_cmp_eq_u32 vcc, 1, v98"); a("s_nop 1"); a("v_cndmask_b32 v7, v7, v116, vcc")
    a.label(L2)
    a("s_waitcnt lgkmcnt(0)")
    a("v_readfirstlane_b32 s49, v5")
    a("s_lshl_b32 s26, s49, 3")
    a("s_barrier")
    L3 = "L_p1_notab"
    a("s_cmp_ge_u32 s47, 8")
    a(f"s_cbranch_scc1 {L3}")
    a("v_lshlrev_b32 v107, 2, v0")
    a(f"v_add_u32 v107, {ENT}, v107")
    for i in range(5): a(f"ds_read_b32 v{112+i}, v107 offset:{i*2048}")
    a("v_lshlrev_b32 v117, 13, v0")
    a("s_lshl_b32 s49, s2, 5")
    a("s_waitcnt lgkmcnt(0)")
    a("buffer_store_dwordx4 v[112:115], v117, s[28:31], s49 offen")
    a("buffer_store_dword v116, v117, s[28:31], s49 offen offset:16")
    a.label(L3)
    for half in range(2):
        recs = [(j, k) for j in range(5*half, 5*half + 5) for k in range(4)]
        for i, (j, k) in enumerate(recs):
            a(f"v_lshrrev_b32 v{108+i}, 16, v{R(j,2*k+1)}")
            a(f"ds_add_rtn_u32 v{108+i}, v{108+i}, v2")
        for i, (j, k) in enumerate(recs):
            if i % 4 == 0: a(f"s_waitcnt lgkmcnt({min(15, 16 - i if i <= 16 else 0)})" if False else f"s_waitcnt lgkmcnt({max(0, min(15, 20 - i - 4))})")
            a(f"v_mov_b32_sdwa v{R(j,2*k+1)}, v{108+i} dst_sel:WORD_1 dst_unused:UNUSED_PRESERVE src0_sel:WORD_0")
    a("s_mov_b32 s50, 0x40000000")
    a("v_add_u32 v3, 65536, v1")
    pairs = [R(j, 2*k) for j in range(10) for k in range(4)] + [88, 90, 92, 94, 6]
    TMP = [96, 97, 98, 99]
    for r in range(3):
        for i, p in enumerate(pairs):
            t = TMP[i % 4]
            if r > 0: a(f"v_add_u32 v{p+1}, 0xc0000000, v{p+1}")
            a(f"v_cmpx_gt_u32 vcc, s50, v{p+1}")
            a(f"v_lshlrev_b32_sdwa v{t}, 3, v{p+1} dst_sel:DWORD dst_unused:UNUSED_PAD src0_sel:DWORD src1_sel:WORD_1")
            a(f"ds_write_b64 v{t}, v[{p}:{p+1}] offset:{WIN}")
            a("s_mov_b64 exec, -1")
        a("s_waitcnt lgkmcnt(0)")
        a("s_barrier")
        n = 8 if r < 2 else 6
        for jj in range(n):
            av = "v1" if jj < 4 else "v3"
            a(f"ds_read_b128 v[{96+4*jj}:{99+4*jj}], {av} offset:{WIN + (jj % 4)*16384}")
        for jj in range(n):
            a(f"s_waitcnt lgkmcnt({n-1-jj})")
            a(f"s_mov_b32 s49, {r*131072 + jj*16384}")
            a(f"buffer_store_dwordx4 v[{96+4*jj}:{99+4*jj}], v1, s[24:27], s49 offen")
        if r < 2:
            a("s_barrier")
            a("s_nop 1")
    a.label(END)
    a("s_endpgm")

def p1_desc():
    return f""".amdhsa_kernel {NAME}
  .amdhsa_next_free_vgpr 128
  .amdhsa_next_free_sgpr 64
  .amdhsa_accum_offset 128
  .amdhsa_group_segment_fixed_size 0
  .amdhsa_kernarg_size 112
  .amdhsa_user_sgpr_count 2
  .amdhsa_user_sgpr_kernarg_segment_ptr 1
  .amdhsa_system_sgpr_workgroup_id_x 1
.end_amdhsa_kernel
"""
```

```python
from asmlib import Asm
import p1

NAME = "consume_kernel"
NB = 500
STG = 0
CNT = 32768
LOOFF = 33280
HIOFF = 64000
P2_LDS = 79360
CSTRIDE = p1.CSTRIDE
SLICE_B = p1.SROWS * 32
NPH = p1.NSL
M_BYTES = 320000 * 32

V_OWNLO = 1
V_E0, V_E1, V_E2, V_E3, V_E4 = 2, 3, 4, 5, 9
V_H16 = 6
V_TR0, V_TR1 = 7, 8
V_INIT = 10
V_CADDR = 11
V_LT = 14
V_GMAP = 15
LTINC = 0x00100010
V_OL, V_OA, V_USED = 12, 13, 31
V_M = 16
V_G0, V_G1 = 16, 17
V_B = 20
FT = [24, 25, 26, 27, 20, 21, 22, 23]
V_A = 28
V_X = 28
V_EP, V_P0 = 32, 33
PX = [12, 13, 16, 17, 18, 19, 20, 21]; PP = list(range(22, 30))
V_EEFF, V_CNTV, V_BP, V_LANE2, V_BASE, V_FOUR, V_REL = 30, 31, 32, 33, 34, 35, 22
V_OOB = 33
REC = 36
ACC = 68
def acc(t, l): return ACC + 12 * t + 4 * l

S_M = 4
S_REC = 8
S_W, S_PH, S_MODE, S_K, S_WIN0, S_WIN32, S_MORE, S_OVF = 12, 13, 14, 15, 16, 17, 18, 19
S_MASK = 20
S_N4 = 36
S_NXT = 41
S_CUR, S_REM, S_NEXT, S_STG, S_T, S_T2 = 46, 47, 48, 49, 50, 51
S_FC, S_GM, S_PAR, S_TB = 52, 53, 54, 55
S_BKT = 56
S_WS = 58
S_TMP2 = 60
S_RT, S_RF, S_RP, S_PF = 62, 63, 57, 69
INV2PI = "0.15915494"

def emit_setup(a):
    a(f"s_load_dwordx2 s[{S_M}:{S_M+1}], s[0:1], 0")
    a(f"s_load_dwordx2 s[{S_WS}:{S_WS+1}], s[0:1], 104")
    a(f"s_and_b32 s{S_T}, s2, 7"); a(f"s_lshr_b32 s{S_T2}, s2, 3")
    a(f"s_mul_i32 s{S_BKT}, s{S_T}, 63")
    a(f"s_sub_i32 s{S_T}, s{S_T}, 4"); a(f"s_max_i32 s{S_T}, s{S_T}, 0")
    a(f"s_sub_u32 s{S_BKT}, s{S_BKT}, s{S_T}")
    a(f"s_add_u32 s{S_BKT}, s{S_BKT}, s{S_T2}")
    a(f"v_lshrrev_b32 v20, 6, v0")
    a(f"v_and_b32 v21, 63, v0")
    a(f"v_readfirstlane_b32 s{S_W}, v20")
    a(f"v_and_b32 v22, 15, v21")
    a(f"v_lshrrev_b32 v23, 4, v21")
    a("s_waitcnt lgkmcnt(0)")
    a(f"s_lshl_b32 s{S_T}, s{S_BKT}, 13")
    a(f"s_add_u32 s{S_T}, s{S_T}, {p1.TABOFF}")
    a(f"s_add_u32 s64, s{S_WS}, s{S_T}"); a(f"s_addc_u32 s65, s{S_WS+1}, 0"); a("s_mov_b32 s66, 8000"); a("s_mov_b32 s67, 0x00020000")
    a(f"v_mov_b32 v{V_OOB}, 0x80000000")
    a(f"s_mov_b32 s{S_PF}, 0")
    a(f"s_lshl_b32 s{S_T}, s{S_W}, 5")
    a(f"v_add_u32 v24, s{S_T}, v21")
    a("v_lshlrev_b32 v24, 5, v24")
    a("v_cmp_gt_u32 vcc, 32, v21")
    a("s_nop 1")
    a(f"v_cndmask_b32 v24, v{V_OOB}, v24, vcc")
    a(f"buffer_load_dwordx4 v[{V_E0}:{V_E3}], v24, s[64:67], 0 offen")
    a(f"buffer_load_dword v{V_E4}, v24, s[64:67], 0 offen offset:16")
    a(f"s_mov_b32 s{S_M+2}, {SLICE_B}"); a(f"s_mov_b32 s{S_M+3}, 0x00020000")
    a(f"s_mov_b32 s{S_REC}, s{S_WS}"); a(f"s_mov_b32 s{S_REC+1}, s{S_WS+1}")
    a(f"s_mov_b32 s{S_REC+2}, {250*CSTRIDE}"); a(f"s_mov_b32 s{S_REC+3}, 0x00020000")
    a("v_bfe_u32 v25, v21, 3, 1")
    a("v_and_b32 v26, 7, v21")
    a("v_lshlrev_b32 v25, 5, v25")
    a("v_lshl_add_u32 v25, v23, 3, v25")
    a("v_add_u32 v25, v25, v26")
    a(f"v_lshlrev_b32 v26, 2, v25"); a(f"v_add_u32 v{V_OWNLO}, {LOOFF}, v26")
    a("v_lshrrev_b32 v25, 1, v21")
    a("v_lshrrev_b32 v26, 3, v25")
    a("v_and_b32 v27, 1, v26"); a("v_lshlrev_b32 v27, 2, v27")
    a("v_add_u32 v27, v27, v25"); a("v_and_b32 v27, 7, v27")
    a("v_lshl_add_u32 v27, v26, 3, v27")
    a("v_lshlrev_b32 v27, 2, v27"); a(f"v_add_u32 v{V_GMAP}, {LOOFF}, v27")
    a(f"v_and_b32 v25, 1, v21"); a(f"v_lshlrev_b32 v{V_H16}, 4, v25")
    a("v_lshrrev_b32 v25, 2, v22")
    a("v_and_b32 v26, 1, v23"); a("v_lshlrev_b32 v26, 2, v26")
    a("v_add_u32 v25, v25, v26")
    a("v_lshl_add_u32 v25, v23, 3, v25")
    a("v_and_b32 v26, 3, v21")
    a("v_lshlrev_b32 v26, 3, v26")
    a("v_lshl_add_u32 v25, v25, 5, v26")
    a(f"s_lshl_b32 s{S_STG}, s{S_W}, 12")
    a(f"v_add_u32 v{V_TR0}, s{S_STG}, v25")
    a(f"v_xor_b32 v{V_TR1}, 128, v{V_TR0}")
    a(f"s_mul_i32 s{S_TB}, s{S_W}, 5")
    a(f"s_add_u32 s{S_TB}, s{S_TB}, 4")
    a(f"s_lshl_b32 s{S_T}, s{S_TB}, 4")
    a(f"v_add_u32 v25, s{S_T}, v22")
    a(f"v_lshl_or_b32 v{V_LT}, v25, 16, v25")
    a(f"v_add_u32 v{V_LT}, {4*LTINC}, v{V_LT}")
    a("v_subrev_u32 v25, 4, v21")
    a("v_mul_u32_u24 v26, 768, v25")
    a(f"v_mov_b32 v{V_INIT}, 0x40000000")
    a("v_cmp_gt_u32 vcc, 40, v25")
    a("s_nop 1")
    a(f"v_cndmask_b32 v{V_INIT}, v{V_INIT}, v26, vcc")
    a("v_cmp_eq_u32 vcc, 56, v21")
    a("s_nop 1")
    a(f"v_cndmask_b32 v{V_INIT}, v{V_INIT}, 0, vcc") if False else None
    a("v_mov_b32 v26, 0")
    a(f"v_cndmask_b32 v{V_INIT}, v{V_INIT}, v26, vcc")
    a(f"v_lshlrev_b32 v{V_CADDR}, 2, v21")
    a(f"ds_write_b32 v{V_CADDR}, v{V_INIT} offset:{CNT}")
    a(f"ds_write_b32 v{V_CADDR}, v{V_INIT} offset:{CNT+256}")
    for i in range(60): a(f"v_mov_b32 v{ACC+i}, 0")
    a(f"s_mov_b32 s{S_FC}, 0xfc")
    a(f"s_mov_b32 s{S_GM}, 0x3fffe0")
    a(f"s_mov_b32 s{S_PAR}, 0")
    a(f"s_mov_b32 s{S_PH}, 0")
    a("s_waitcnt vmcnt(0) lgkmcnt(0)")
    a("s_barrier")

def emit_pconst(a):
    a(f"v_mbcnt_lo_u32_b32 v{V_REL}, -1, 0"); a(f"v_mbcnt_hi_u32_b32 v{V_REL}, -1, v{V_REL}")
    a(f"s_lshl_b32 s{S_T}, s{S_W}, 5")
    a(f"v_lshrrev_b32 v{V_BP}, 4, v{V_REL}")
    a(f"v_and_b32 v{V_LANE2}, 15, v{V_REL}")
    a(f"v_add_u32 v{V_BASE}, s{S_T}, v{V_BP}")
    a(f"s_mov_b32 s{S_T2}, {CSTRIDE}")
    a(f"v_lshlrev_b32 v{V_BP}, 2, v{V_BP}")
    a(f"v_mul_lo_u32 v{V_BASE}, v{V_BASE}, s{S_T2}")
    a(f"v_lshlrev_b32 v{V_LANE2}, 1, v{V_LANE2}")
    a(f"v_mov_b32 v{V_FOUR}, 4")

def emit_addr(a, zero_win, src=None):
    X = PX
    src = V_EEFF if src is None else src
    for i in range(8):
        a(f"ds_bpermute_b32 v{X[i]}, v{V_BP}, v{src} offset:{16*i}")
    rel = V_LANE2
    if not zero_win:
        a(f"v_add_u32 v{V_REL}, s{S_WIN32}, v{V_LANE2}"); rel = V_REL
    a("s_waitcnt lgkmcnt(0)")
    for i in range(8):
        a(f"v_add_u32_sdwa v{REC+4*i}, v{X[i]}, v{rel} dst_sel:DWORD dst_unused:UNUSED_PAD src0_sel:WORD_0 src1_sel:DWORD")
    for i in range(8):
        a(f"v_cmp_lt_u32_sdwa s[{S_MASK+2*i}:{S_MASK+2*i+1}], v{REC+4*i}, v{X[i]} src0_sel:DWORD src1_sel:WORD_1")
    for i in range(8):
        a(f"v_lshl_add_u32 v{REC+4*i}, v{REC+4*i}, 3, v{V_BASE}")

def emit_rload(a, i, last=True):
    a(f"s_mov_b32 s{S_RT}, {i*4*CSTRIDE}")
    a(f"s_mov_b64 exec, s[{S_MASK+2*i}:{S_MASK+2*i+1}]")
    a(f"buffer_load_dwordx4 v[{REC+4*i}:{REC+4*i+3}], v{REC+4*i}, s[{S_REC}:{S_REC+3}], s{S_RT} offen" + (" nt" if OPT.get("nt") else ""))
    if last: a("s_mov_b64 exec, -1")

def emit_bin(a, par):
    cnt = CNT + 256 * par
    X = PX; P = PP
    for h in range(2):
        a(f"s_waitcnt vmcnt({4 if h == 0 else 0})")
        for ii in range(4):
            i = 4 * h + ii
            a(f"s_mov_b64 exec, s[{S_MASK+2*i}:{S_MASK+2*i+1}]")
            for r in range(2):
                A = X[2*ii + r]
                a(f"v_and_b32_sdwa v{A}, s{S_FC}, v{REC+4*i+2*r} dst_sel:DWORD dst_unused:UNUSED_PAD src0_sel:DWORD src1_sel:BYTE_3")
                a(f"ds_add_rtn_u32 v{A}, v{A}, v{V_FOUR} offset:{cnt}")
        a("s_mov_b64 exec, -1")
        a("s_waitcnt lgkmcnt(0)")
        for ii in range(4):
            i = 4 * h + ii
            a(f"s_mov_b64 exec, s[{S_MASK+2*i}:{S_MASK+2*i+1}]")
            for r in range(2):
                A = X[2*ii + r]; A2 = P[2*ii + r]
                a(f"ds_write_b32 v{A}, v{REC+4*i+2*r} offset:{LOOFF}")
                a(f"v_lshrrev_b32 v{A2}, 1, v{A}")
                a(f"ds_write_b16 v{A2}, v{REC+4*i+2*r+1} offset:{HIOFF}")
        a("s_mov_b64 exec, -1")

OPT = {}
PROF_S = 68
V_PROF = 35
def mark(a):
    if not OPT.get("prof"): return
    a("s_memtime s[70:71]")
    a("s_waitcnt lgkmcnt(0)")
    a(f"s_mov_b32 m0, s{PROF_S}")
    a("s_nop 0")
    a(f"v_writelane_b32 v{OPT['vprof']}, s70, m0")
    a(f"s_add_u32 s{PROF_S}, s{PROF_S}, 1")
def prof_out(a):
    if not OPT.get("prof"): return
    L = a.newlabel("noprof")
    a("s_memrealtime s[70:71]"); a("s_waitcnt lgkmcnt(0)"); a("s_sub_u32 s70, s70, s78")
    a(f"v_writelane_b32 v{OPT['vprof']}, s70, 23")
    a(f"s_cmp_eq_u32 s2, {OPT['prof']-1}")
    a(f"s_cbranch_scc0 {L}")
    a(f"s_cmp_lt_u32 s{S_W}, 2")
    a(f"s_cbranch_scc0 {L}")
    a("s_load_dwordx2 s[72:73], s[0:1], 96")
    a("s_waitcnt lgkmcnt(0)")
    a("s_mov_b32 s74, 256"); a("s_mov_b32 s75, 0x00020000")
    a("v_mbcnt_lo_u32_b32 v60, -1, 0"); a("v_mbcnt_hi_u32_b32 v60, -1, v60")
    a("v_cmp_gt_u32 vcc, 24, v60"); a("s_and_saveexec_b64 s[70:71], vcc")
    a(f"s_mul_i32 s70, s{S_W}, 96"); a("v_lshlrev_b32 v60, 2, v60"); a("v_add_u32 v60, s70, v60")
    a(f"buffer_store_dword v{OPT['vprof']}, v60, s[72:75], 0 offen")
    a("s_waitcnt vmcnt(0)")
    a.label(L)
def GPOL():
    return {0: "", 1: "nt ", 2: "sc1 ", 3: "sc0 sc1 ", 4: "sc0 ", 5: "sc0 nt ", 6: "sc1 nt "}[OPT.get("gpol", 0)]
def emit_f1(a):
    a(f"v_add_u32 v{V_G0}, s{S_NEXT}, v{V_GMAP}")
    a(f"v_add_u32 v{V_OL}, s{S_NEXT}, v{V_OWNLO}")
    a(f"ds_read2_b32 v[{V_G0}:{V_G1}], v{V_G0} offset0:0 offset1:32")
    a(f"v_lshrrev_b32 v{V_OA}, 1, v{V_OL}")
    a(f"ds_read_b32 v{V_OL}, v{V_OL}")
    a(f"ds_read_u16_d16_hi v{V_OA}, v{V_OA} offset:{HIOFF - LOOFF//2}")
    a(f"s_mov_b32 m0, s{S_STG}")
    a("s_waitcnt lgkmcnt(2)")
    a(f"v_and_or_b32 v{V_G0}, v{V_G0}, s{S_GM}, v{V_H16}")
    a(f"v_and_or_b32 v{V_G1}, v{V_G1}, s{S_GM}, v{V_H16}")
    if not OPT.get("no_dma"): a(f"buffer_load_dwordx4 v{V_G0}, s[{S_M}:{S_M+3}], 0 offen {GPOL()}lds")
    a(f"s_add_u32 m0, s{S_STG}, 1024")
    a(f"s_xor_b32 s{S_STG}, s{S_STG}, 2048")
    if not OPT.get("no_dma"): a(f"buffer_load_dwordx4 v{V_G1}, s[{S_M}:{S_M+3}], 0 offen {GPOL()}lds")

def emit_f2(a):
    if OPT.get("no_f2"): return
    F = FT
    ang = V_OA; lo = V_OL
    a(f"v_mul_f32 v{F[0]}, {INV2PI}, v{ang}")
    a(f"v_mul_f32 v{F[1]}, 0x40400000, v{ang}")
    a(f"v_fract_f32 v{F[0]}, v{F[0]}")
    a(f"v_cvt_pk_bf16_f32 v{F[1]}, 0, v{F[1]}")
    a(f"v_cos_f32 v{F[0]}, v{F[0]}")
    a(f"v_mul_f32 v{F[1]}, {INV2PI}, v{F[1]}")
    a(f"v_lshrrev_b32 v{F[3]}, 22, v{lo}")
    a(f"v_fract_f32 v{F[1]}, v{F[1]}")
    a(f"v_add_f32 v{F[2]}, v{F[0]}, v{F[0]}")
    a(f"v_cos_f32 v{F[1]}, v{F[1]}")
    a(f"v_fma_f32 v{F[2]}, v{F[2]}, v{F[0]}, -1.0")
    qp = "quad_perm:[1,1,3,3] row_mask:0xf bank_mask:0xf"
    a(f"v_mov_b32_dpp v{F[4]}, v{F[0]} {qp}")
    a(f"v_mov_b32_dpp v{F[7]}, v{F[3]} {qp}")
    a(f"v_mov_b32_dpp v{F[5]}, v{F[1]} {qp}")
    a(f"v_mov_b32_dpp v{F[6]}, v{F[2]} {qp}")
    a(f"v_cvt_pk_bf16_f32 v{V_P0}, v{F[0]}, v{F[4]}")
    a(f"v_lshl_or_b32 v{V_EP}, v{F[7]}, 16, v{F[3]}")
    a(f"v_cvt_pk_bf16_f32 v{V_P0+2}, v{F[1]}, v{F[5]}")
    a(f"v_cvt_pk_bf16_f32 v{V_P0+1}, v{F[2]}, v{F[6]}")

def mfma(a, t, l, breg):
    c = acc(t, l)
    a(f"v_mfma_f32_16x16x32_bf16 v[{c}:{c+3}], v[{V_A}:{V_A+3}], v[{breg}:{breg+3}], v[{c}:{c+3}]")

def emit_group(a, t, grp):
    i0 = 8 * grp
    bc = [f"row_newbcast:{i0+2*p} row_mask:0xf bank_mask:0xf" for p in range(4)]
    nob = OPT.get("no_b", 0)
    if not nob & 1:
        for p in range(4): a(f"v_xor_b32_dpp v{V_M+p}, v{V_EP}, v{V_LT} {bc[p]}")
        for p in range(4): a(f"v_pk_add_u16 v{V_M+p}, v{V_M+p}, -1")
        for p in range(4): a(f"v_pk_ashrrev_i16 v{V_M+p}, 15, v{V_M+p} op_sel_hi:[0,1]")
    def bfr(l):
        if nob & 2: return
        B = V_B + 4 * (l & 1)
        for p in range(4): a(f"v_and_b32_dpp v{B+p}, v{V_P0+l}, v{V_M+p} {bc[p]}")
    bfr(0); bfr(1)
    a("s_waitcnt lgkmcnt(0)")
    mfma(a, t, 0, V_B); mfma(a, t, 1, V_B + 4)
    bfr(2)
    a("s_nop 1")
    mfma(a, t, 2, V_B)

def emit_consume(a):
    for t in range(5):
        a(f"s_add_u32 s{S_T}, s{S_TB}, {t}")
        a(f"v_readlane_b32 s{S_N4+t}, v{V_USED}, s{S_T}")
    a(f"s_sub_u32 s{S_T2}, s{S_TB}, 4")
    a(f"s_mul_i32 s{S_T2}, s{S_T2}, 768")
    a(f"v_and_b32 v{V_X}, 0xff, v{V_CADDR}")
    a(f"v_mov_b32 v{V_X+1}, -1")
    for t in range(5):
        a(f"s_add_u32 s{S_T}, s{S_N4+t}, 255")
        a(f"s_andn2_b32 s{S_T}, s{S_T}, 255")
        a(f"v_add_u32 v{V_X+2}, s{S_N4+t}, v{V_X}")
        a(f"v_cmpx_gt_u32 vcc, s{S_T}, v{V_X+2}")
        a(f"s_add_u32 s{S_T}, s{S_T2}, {t*768}")
        a(f"v_add_u32 v{V_X+2}, s{S_T}, v{V_X+2}")
        a(f"ds_write_b32 v{V_X+2}, v{V_X+1} offset:{LOOFF}")
        a("s_mov_b64 exec, -1")
    TILES = a.newlabel("tiles")
    a(f"s_mov_b32 s{S_NXT+4}, -1")
    for t in range(3, -1, -1):
        a(f"s_add_u32 s{S_T}, s{S_T2}, {(t+1)*768}")
        a(f"s_cmp_gt_u32 s{S_N4+t+1}, 0")
        a(f"s_cselect_b32 s{S_NXT+t}, s{S_T}, s{S_NXT+t+1}")
    a(f"s_cmp_gt_u32 s{S_N4}, 0")
    a(f"s_cselect_b32 s{S_NEXT}, s{S_T2}, s{S_NXT}")
    a(f"s_mov_b32 s{S_RP}, 0")
    a(f"s_cmp_eq_u32 s{S_NEXT}, -1")
    a(f"s_cbranch_scc1 {TILES}")
    emit_f1(a)
    a("s_waitcnt lgkmcnt(0)")
    emit_f2(a)
    a.label(TILES)
    for t in range(5):
        SKIP = a.newlabel("tskip"); LOOP = a.newlabel("tloop"); NONE = a.newlabel("tnone"); LB = a.newlabel("tb"); NOB = a.newlabel("tnob"); NOF2 = a.newlabel("tnof2")
        NOR = a.newlabel("tnor"); W2 = a.newlabel("tw2"); TEND = a.newlabel("tend"); NOR2 = a.newlabel("tnor2")
        pf = t < 4
        if t == 0: a(f"v_subrev_u32 v{V_LT}, {4*LTINC}, v{V_LT}")
        else: a(f"v_add_u32 v{V_LT}, {LTINC}, v{V_LT}")
        a(f"s_cmp_eq_u32 s{S_N4+t}, 0")
        a(f"s_cbranch_scc1 {SKIP}")
        a(f"s_mov_b32 s{S_REM}, s{S_N4+t}")
        if pf: a(f"s_mov_b32 s{S_RF}, 1")
        a.label(LOOP)
        a(f"s_add_u32 s{S_T}, s{S_NEXT}, 256")
        a(f"s_cmp_gt_u32 s{S_REM}, 256")
        a(f"s_cselect_b32 s{S_NEXT}, s{S_T}, s{S_NXT+t}")
        a(f"s_cmp_eq_u32 s{S_NEXT}, -1")
        a(f"s_cbranch_scc1 {NONE}")
        emit_f1(a)
        if pf:
            a(f"s_cmp_eq_u32 s{S_RF}, 0")
            a(f"s_cbranch_scc1 {NOR}")
            emit_rload(a, 2*t, False); emit_rload(a, 2*t+1)
            a(f"s_mov_b32 s{S_RF}, 0"); a(f"s_mov_b32 s{S_RP}, 1")
            a("s_waitcnt vmcnt(4)")
            a(f"s_branch {LB}")
            a.label(NOR)
        a(f"s_cmp_eq_u32 s{S_RP}, 0")
        a(f"s_mov_b32 s{S_RP}, 0")
        a(f"s_cbranch_scc1 {W2}")
        a("s_waitcnt vmcnt(4)")
        a(f"s_branch {LB}")
        a.label(W2)
        a("s_waitcnt vmcnt(2)")
        a(f"s_branch {LB}")
        a.label(NONE)
        a("s_waitcnt vmcnt(0)")
        if pf:
            a(f"s_cmp_eq_u32 s{S_RF}, 0")
            a(f"s_cbranch_scc1 {LB}")
            emit_rload(a, 2*t, False); emit_rload(a, 2*t+1)
            a(f"s_mov_b32 s{S_RF}, 0")
        a.label(LB)
        a(f"ds_read_b64_tr_b16 v[{V_A}:{V_A+1}], v{V_TR0}")
        a(f"ds_read_b64_tr_b16 v[{V_A+2}:{V_A+3}], v{V_TR1}")
        emit_group(a, t, 0)
        a(f"s_cmp_gt_u32 s{S_REM}, 128")
        a(f"s_cbranch_scc0 {NOB}")
        a(f"ds_read_b64_tr_b16 v[{V_A}:{V_A+1}], v{V_TR0} offset:1024")
        a(f"ds_read_b64_tr_b16 v[{V_A+2}:{V_A+3}], v{V_TR1} offset:1024")
        emit_group(a, t, 1)
        a.label(NOB)
        a(f"v_xor_b32 v{V_TR0}, 2048, v{V_TR0}")
        a(f"v_xor_b32 v{V_TR1}, 2048, v{V_TR1}")
        a(f"s_cmp_eq_u32 s{S_NEXT}, -1")
        a(f"s_cbranch_scc1 {NOF2}")
        emit_f2(a)
        a.label(NOF2)
        a(f"s_sub_u32 s{S_REM}, s{S_REM}, 256")
        a(f"s_cmp_gt_i32 s{S_REM}, 0")
        a(f"s_cbranch_scc1 {LOOP}")
        if pf:
            a(f"s_branch {TEND}")
            a.label(SKIP)
            emit_rload(a, 2*t, False); emit_rload(a, 2*t+1)
            a(f"s_mov_b32 s{S_RP}, 1")
            a.label(TEND)
        else:
            a.label(SKIP)

def emit_dbg_s(a):
    a(f"s_add_u32 s64, s{S_WS}, 0x6000000"); a(f"s_addc_u32 s65, s{S_WS+1}, 0"); a("s_mov_b32 s66, 61440000"); a("s_mov_b32 s67, 0x00020000")
    a("v_mbcnt_lo_u32_b32 v21, -1, 0"); a("v_mbcnt_hi_u32_b32 v21, -1, v21"); a(f"v_and_b32 v22, 15, v21"); a(f"v_lshrrev_b32 v23, 4, v21")
    a(f"s_mul_i32 s{S_T}, s{S_BKT}, 640"); a(f"s_mul_i32 s{S_T2}, s{S_W}, 80"); a(f"s_add_u32 s{S_T}, s{S_T}, s{S_T2}")
    a(f"v_add_u32 v28, s{S_T}, v22")
    a(f"v_mul_u32_u24 v28, 192, v28"); a("v_lshl_add_u32 v28, v23, 4, v28")
    for t in range(5):
        for l in range(3):
            a(f"s_mov_b32 s{S_T}, {t*16*192 + l*64}")
            a(f"buffer_store_dwordx4 v[{acc(t,l)}:{acc(t,l)+3}], v28, s[64:67], s{S_T} offen")
    a("s_waitcnt vmcnt(0)")

def emit_epilogue(a):
    a("s_load_dwordx2 s[20:21], s[0:1], 72")
    a("s_load_dwordx2 s[24:25], s[0:1], 80")
    a("s_load_dwordx2 s[28:29], s[0:1], 56")
    a("s_load_dwordx2 s[32:33], s[0:1], 64")
    a("s_load_dwordx2 s[36:37], s[0:1], 24")
    a("s_load_dwordx2 s[40:41], s[0:1], 40")
    a("s_load_dwordx2 s[44:45], s[0:1], 88")
    a("s_load_dwordx2 s[64:65], s[0:1], 0")
    for base, size in ((20, 512), (24, 512), (28, 256), (32, 768), (36, 640000), (40, 16), (44, M_BYTES), (64, M_BYTES)):
        a(f"s_mov_b32 s{base+2}, {size}"); a(f"s_mov_b32 s{base+3}, 0x00020000")
    a("v_mbcnt_lo_u32_b32 v21, -1, 0"); a("v_mbcnt_hi_u32_b32 v21, -1, v21")
    a(f"v_and_b32 v22, 15, v21")
    a(f"v_lshrrev_b32 v23, 4, v21")
    a(f"v_lshlrev_b32 v24, 4, v21")
    a(f"s_lshl_b32 s{S_STG}, s{S_W}, 12")
    a("s_waitcnt lgkmcnt(0)")
    for k, base in enumerate((20, 24, 28, 32)):
        a(f"s_add_u32 m0, s{S_STG}, {1024*k}")
        a("s_nop 0")
        a(f"buffer_load_dwordx4 v24, s[{base}:{base+3}], 0 offen lds")
    a("v_and_b32 v25, 1, v23"); a("v_lshlrev_b32 v25, 3, v25")
    a("buffer_load_dwordx2 v[26:27], v25, s[40:43], 0 offen")
    a(f"s_mul_i32 s{S_T}, s{S_BKT}, 640")
    a(f"s_mul_i32 s{S_T2}, s{S_W}, 80")
    a(f"s_add_u32 s{S_T}, s{S_T}, s{S_T2}")
    a(f"v_add_u32 v28, s{S_T}, v22")
    a("v_lshlrev_b32 v29, 1, v28")
    a("v_lshlrev_b32 v30, 5, v28")
    a("v_lshl_add_u32 v30, v23, 3, v30")
    for t in range(5):
        a(f"buffer_load_ushort v{31+t}, v29, s[36:39], 0 offen offset:{32*t}")
        a(f"buffer_load_dwordx2 v[{36+2*t}:{37+2*t}], v30, s[64:67], 0 offen offset:{512*t}")
    a(f"v_lshlrev_b32 v25, 3, v21"); a(f"v_add_u32 v25, s{S_STG}, v25")
    a("v_lshrrev_b32 v46, 2, v21")
    a("v_mul_u32_u24 v46, 96, v46")
    a("v_and_b32 v47, 3, v21"); a("v_lshl_add_u32 v46, v47, 3, v46")
    a("v_min_u32 v46, 832, v46")
    a(f"v_add_u32 v46, s{S_STG}, v46")
    a("s_waitcnt vmcnt(0)")
    WD, WU, WR, WS = 48, 50, 52, 54
    a(f"ds_read_b64_tr_b16 v[{WD}:{WD+1}], v25")
    a(f"ds_read_b64_tr_b16 v[{WU}:{WU+1}], v25 offset:1024")
    a(f"ds_read_b64_tr_b16 v[{WR}:{WR+1}], v25 offset:2048")
    for l in range(3):
        a(f"ds_read_b64_tr_b16 v[{WS+2*l}:{WS+2*l+1}], v46 offset:{3072+32*l}")
    a("v_lshlrev_b32 v60, 16, v26"); a("v_and_b32 v61, 0xffff0000, v26")
    a("v_lshlrev_b32 v62, 16, v27"); a("v_and_b32 v63, 0xffff0000, v27")
    a("s_mov_b32 s62, 0xc1200000")
    a("s_mov_b32 s63, 0x3fb8aa3b")
    a("v_cmp_gt_u32 s[60:61], 2, v23")
    a("s_waitcnt lgkmcnt(0)")
    for t in range(5):
        d = 31 + t; mm = 36 + 2 * t
        R = 20
        R = 64
        a(f"v_lshlrev_b32 v{d}, 16, v{d}")
        for i in range(4): a(f"v_sub_f32 v{R+i}, v{d}, v{60+i}")
        for i in range(4): a(f"v_cvt_pk_bf16_f32 v{R+i}, 0, v{R+i}")
        for i in range(4): a(f"v_mul_f32 v{R+i}, v{R+i}, v{R+i}")
        for i in range(4): a(f"v_cvt_pk_bf16_f32 v{R+i}, 0, v{R+i}")
        for i in range(4): a(f"v_mul_f32 v{R+i}, s62, v{R+i}")
        for i in range(4): a(f"v_cvt_pk_bf16_f32 v{R+i}, 0, v{R+i}")
        for i in range(4): a(f"v_mul_f32 v{R+i}, s63, v{R+i}")
        for i in range(4): a(f"v_exp_f32 v{R+i}, v{R+i}")
        a("s_nop 0")
        RB = 46
        a(f"v_cvt_pk_bf16_f32 v{RB}, v{R}, v{R+1}")
        a(f"v_cvt_pk_bf16_f32 v{RB+1}, v{R+2}, v{R+3}")
        a(f"v_cndmask_b32 v{RB}, 0, v{RB}, s[60:61]")
        a(f"v_cndmask_b32 v{RB+1}, 0, v{RB+1}, s[60:61]")
        for l in range(3):
            c = acc(t, l)
            a(f"v_cvt_pk_bf16_f32 v{c}, v{c}, v{c+1}")
            a(f"v_cvt_pk_bf16_f32 v{c+1}, v{c+2}, v{c+3}")
        U = [4, 8, 12]; W = [16, 24, 64]; G = 20
        a("s_nop 1")
        for l in range(3):
            c = acc(t, l)
            a(f"v_mfma_f32_16x16x16_bf16 v[{U[l]}:{U[l]+3}], v[{WD}:{WD+1}], v[{c}:{c+1}], 0")
        for l in range(3):
            a(f"v_mfma_f32_16x16x16_bf16 v[{W[l]}:{W[l]+3}], v[{WS+2*l}:{WS+2*l+1}], v[{RB}:{RB+1}], 0")
        c = acc(t, 0)
        GG = acc(t, 1)
        a(f"v_mfma_f32_16x16x16_bf16 v[{GG}:{GG+3}], v[{WR}:{WR+1}], v[{RB}:{RB+1}], 0")
        a("s_nop 7")
        for r in range(4):
            a(f"v_mul_f32 v{U[0]+r}, v{U[0]+r}, v{W[0]+r}")
        for r in range(4):
            a(f"v_fma_f32 v{U[0]+r}, v{U[1]+r}, v{W[1]+r}, v{U[0]+r}")
        for r in range(4):
            a(f"v_fma_f32 v{U[0]+r}, v{U[2]+r}, v{W[2]+r}, v{U[0]+r}")
        a(f"v_cvt_pk_bf16_f32 v{U[1]}, v{U[0]}, v{U[0]+1}")
        a(f"v_cvt_pk_bf16_f32 v{U[1]+1}, v{U[0]+2}, v{U[0]+3}")
        a("s_nop 1")
        VV = U[2]
        a(f"v_mfma_f32_16x16x16_bf16 v[{VV}:{VV+3}], v[{WU}:{WU+1}], v[{U[1]}:{U[1]+1}], 0")
        for r in range(4): a(f"v_cvt_pk_bf16_f32 v{GG+r}, 0, v{GG+r}")
        a(f"v_lshlrev_b32 v{W[0]}, 16, v{mm}"); a(f"v_and_b32 v{W[0]+1}, 0xffff0000, v{mm}")
        a(f"v_lshlrev_b32 v{W[0]+2}, 16, v{mm+1}"); a(f"v_and_b32 v{W[0]+3}, 0xffff0000, v{mm+1}")
        a("s_nop 1")
        for r in range(4): a(f"v_cvt_pk_bf16_f32 v{VV+r}, 0, v{VV+r}")
        for r in range(4): a(f"v_mul_f32 v{VV+r}, v{VV+r}, v{GG+r}")
        for r in range(4): a(f"v_cvt_pk_bf16_f32 v{VV+r}, 0, v{VV+r}")
        for r in range(4): a(f"v_add_f32 v{VV+r}, v{VV+r}, v{W[0]+r}")
        a(f"v_cvt_pk_bf16_f32 v{mm}, v{VV}, v{VV+1}")
        a(f"v_cvt_pk_bf16_f32 v{mm+1}, v{VV+2}, v{VV+3}")
        a(f"buffer_store_dwordx2 v[{mm}:{mm+1}], v30, s[44:47], 0 offen offset:{512*t}")

def gen_p2(a, opt=None):
    opt = opt or {}
    OPT.clear(); OPT.update(opt)
    a.label(NAME)
    END = "L_p2_end"
    a(f"s_cmp_ge_u32 s2, {NB}")
    a(f"s_cbranch_scc1 {END}")
    if opt.get("prof"):
        OPT["vprof"] = 0
        a(f"s_mov_b32 s{PROF_S}, 1")
        a("s_memtime s[76:77]")
        a("s_memrealtime s[78:79]")
    emit_setup(a)
    if opt.get("prof"): a("v_writelane_b32 v0, s76, 0")
    PHASE = "L_p2_phase"; ROUND = "L_p2_round"; WLOOP = "L_p2_wloop"; PAR1 = "L_p2_par1"; PDONE = "L_p2_pdone"
    GATE = "L_p2_gate"; GATED = "L_p2_gated"; NOMORE = "L_p2_nomore"; SKIPC = "L_p2_skipc"; SLOW = "L_p2_slow"; PHDONE = "L_p2_phdone"; NEXTK = "L_p2_nextk"
    a.label(PHASE)

    a(f"s_mov_b32 s{S_MODE}, 0"); a(f"s_mov_b32 s{S_K}, 0"); a(f"s_mov_b32 s{S_WIN0}, 0")
    a.label(ROUND)
    mark(a)
    pm = opt.get("prio", 1)
    if pm >= 2: a("s_setprio 3")
    HAVE = "L_p2_have"; BIN = "L_p2_bin"; PFSLOW = "L_p2_pfslow"; PFD = "L_p2_pfd"; NOOVF = "L_p2_noovf"
    emit_pconst(a)
    a(f"v_mov_b32 v{V_EEFF}, v{V_E0}")
    a(f"s_cmp_eq_u32 s{S_MODE}, 0")
    a(f"s_cbranch_scc1 {GATED}")
    a(f"s_lshr_b32 s{S_T}, s{S_K}, 3")
    a(f"s_and_b32 s{S_T2}, s{S_K}, 7")
    a(f"s_lshl_b32 s{S_T2}, s{S_T2}, 2")
    a(f"s_lshl_b32 s{S_T2}, 15, s{S_T2}")
    a(f"s_cmp_eq_u32 s{S_T}, s{S_W}")
    a(f"s_cselect_b32 s{S_TMP2}, s{S_T2}, 0")
    a(f"s_mov_b32 s{S_TMP2+1}, 0")
    a(f"v_cndmask_b32 v{V_EEFF}, 0, v{V_E0}, s[{S_TMP2}:{S_TMP2+1}]")
    a.label(GATED)
    a(f"v_sub_u32_sdwa v{V_CNTV}, v{V_EEFF}, v{V_EEFF} dst_sel:DWORD dst_unused:UNUSED_PAD src0_sel:WORD_1 src1_sel:WORD_0")
    a(f"s_lshl_b32 s{S_WIN32}, s{S_WIN0}, 5")
    a(f"s_cmp_eq_u32 s{S_PF}, 0")
    a(f"s_mov_b32 s{S_PF}, 0")
    a(f"s_cbranch_scc0 {BIN}")
    a.label(WLOOP)
    emit_addr(a, False)
    for i in range(8): emit_rload(a, i, i == 7)
    a.label(BIN)
    a(f"s_cmp_eq_u32 s{S_PAR}, 0")
    a(f"s_cbranch_scc0 {PAR1}")
    emit_bin(a, 0)
    a(f"s_branch {PDONE}")
    a.label(PAR1)
    emit_bin(a, 1)
    a.label(PDONE)
    if opt.get("prof2"): mark(a)
    a(f"s_add_u32 s{S_WIN32}, s{S_WIN32}, 32")
    a(f"v_cmp_lt_u32 vcc, s{S_WIN32}, v{V_CNTV}")
    a(f"s_cbranch_vccz {NOMORE}")
    a(f"s_cmp_eq_u32 s{S_MODE}, 0")
    a(f"s_cbranch_scc1 {WLOOP}")
    a(f"v_mov_b32 v20, s{S_PAR}"); a("v_mov_b32 v21, 1")
    a(f"ds_write_b32 v20, v21 offset:{CNT + 56*4}")
    a.label(NOMORE)
    a(f"s_cmp_eq_u32 s{S_MODE}, 0")
    a(f"s_cbranch_scc0 {PFSLOW}")
    emit_addr(a, True, V_E1)
    a(f"s_mov_b32 s{S_PF}, 1")
    a(f"s_branch {PFD}")
    a.label(PFSLOW)
    for i in range(8): a(f"s_mov_b64 s[{S_MASK+2*i}:{S_MASK+2*i+1}], 0")
    a.label(PFD)
    a("s_waitcnt lgkmcnt(0)")
    mark(a)
    a("s_barrier")
    if not opt.get("prof2"): mark(a)
    lv = {1: [3,2,1,0,0], 2: [2,1,0,2,1], 3: [2,2,1,1,0], 4: [2,1,1,0,0], 5: [0,0,0,0,0], 6: [2,1,0,0,0]}.get(pm)
    if lv:
        for ph in range(NPH):
            L = a.newlabel("pr")
            a(f"s_cmp_eq_u32 s{S_PH}, {ph}"); a(f"s_cbranch_scc0 {L}"); a(f"s_setprio {lv[ph]}"); a.label(L)
    a(f"ds_read_b32 v{V_USED}, v{V_CADDR} offset:{CNT}")
    a(f"v_xor_b32 v{V_CADDR}, 256, v{V_CADDR}")
    a(f"s_xor_b32 s{S_PAR}, s{S_PAR}, 256")
    a(f"ds_write_b32 v{V_CADDR}, v{V_INIT} offset:{CNT}")
    a("s_waitcnt lgkmcnt(1)")
    a(f"v_readlane_b32 s{S_MORE}, v{V_USED}, 56")
    a(f"v_sub_u32 v{V_USED}, v{V_USED}, v{V_INIT}")
    a(f"v_cmp_lt_u32 vcc, 768, v{V_USED}") if False else None
    a(f"s_movk_i32 s{S_T}, 768")
    a(f"v_cmp_lt_u32 vcc, s{S_T}, v{V_USED}")
    a(f"s_mov_b32 s{S_TMP2}, 0xfffffff0"); a(f"s_mov_b32 s{S_TMP2+1}, 0xfff")
    a(f"s_and_b64 s[{S_TMP2}:{S_TMP2+1}], s[{S_TMP2}:{S_TMP2+1}], vcc")
    a(f"s_cselect_b32 s{S_OVF}, 1, 0")
    a(f"s_cbranch_scc0 {NOOVF}")
    a(f"s_mov_b32 s{S_PF}, 0")
    a(f"s_branch {SKIPC}")
    a.label(NOOVF)
    emit_consume(a)
    a.label(SKIPC)
    a("s_waitcnt lgkmcnt(0)")
    mark(a)
    a("s_barrier")
    a(f"s_cmp_eq_u32 s{S_OVF}, 0")
    a(f"s_cbranch_scc1 {SLOW}")
    a(f"s_mov_b32 s{S_MODE}, 1"); a(f"s_mov_b32 s{S_K}, 0"); a(f"s_mov_b32 s{S_WIN0}, 0")
    a(f"s_branch {ROUND}")
    a.label(SLOW)
    a(f"s_cmp_eq_u32 s{S_MODE}, 0")
    a(f"s_cbranch_scc1 {PHDONE}")
    a(f"s_cmp_eq_u32 s{S_MORE}, 0")
    a(f"s_cbranch_scc1 {NEXTK}")
    a(f"s_add_u32 s{S_WIN0}, s{S_WIN0}, 1")
    a(f"s_branch {ROUND}")
    a.label(NEXTK)
    a(f"s_mov_b32 s{S_WIN0}, 0")
    a(f"s_add_u32 s{S_K}, s{S_K}, 1")
    a(f"s_cmp_lt_u32 s{S_K}, 64")
    a(f"s_cbranch_scc1 {ROUND}")
    a.label(PHDONE)
    a(f"v_mov_b32 v{V_E0}, v{V_E1}"); a(f"v_mov_b32 v{V_E1}, v{V_E2}"); a(f"v_mov_b32 v{V_E2}, v{V_E3}")
    a(f"v_mov_b32 v{V_E3}, v{V_E4}"); a(f"v_mov_b32 v{V_E4}, 0")
    a(f"s_add_u32 s{S_M}, s{S_M}, {SLICE_B}"); a(f"s_addc_u32 s{S_M+1}, s{S_M+1}, 0")
    a(f"s_add_u32 s{S_PH}, s{S_PH}, 1")
    a(f"s_cmp_lt_u32 s{S_PH}, {NPH}")
    a(f"s_cbranch_scc1 {PHASE}")
    if opt.get('dbg_s'): emit_dbg_s(a)
    mark(a)
    a("s_waitcnt vmcnt(0)")
    emit_epilogue(a)
    mark(a)
    prof_out(a)
    a.label(END)
    a("s_endpgm")

def p2_desc(opt=None):
    return f""".amdhsa_kernel {NAME}
  .amdhsa_next_free_vgpr 128
  .amdhsa_next_free_sgpr 80
  .amdhsa_accum_offset 128
  .amdhsa_group_segment_fixed_size 0
  .amdhsa_kernarg_size 112
  .amdhsa_user_sgpr_count 2
  .amdhsa_user_sgpr_kernarg_segment_ptr 1
  .amdhsa_system_sgpr_workgroup_id_x 1
.end_amdhsa_kernel
"""
```

```python
from asmlib import Asm

NCHUNK = 250
CH = 40960
NSL = 5
SROWS = 64000
CSTRIDE = 261120
WREC = 21760
WBYTES = WREC * 6
TABOFF = 0x5400000
TABSIZE = 500 * 8192
SCR = 10240
WIN = 10496
ENT = WIN + 131072
P1_LDS = ENT + 10240
NAME = "partition_kernel"

def gen_p1(a: Asm, opt=None):
    opt = opt or {}
    nm = [0]
    def mk():
        if not opt.get("p1prof"): return
        a(f"s_memtime s[{64+2*nm[0]}:{65+2*nm[0]}]"); nm[0] += 1
    a.label(NAME)
    END = "L_p1_end"
    a(f"s_cmp_ge_u32 s2, {NCHUNK}")
    a(f"s_cbranch_scc1 {END}")
    mk()
    a("s_load_dwordx4 s[4:7], s[0:1], 8")
    a("s_load_dwordx2 s[8:9], s[0:1], 32")
    a("s_load_dwordx2 s[10:11], s[0:1], 104")
    a("v_lshlrev_b32 v1, 4, v0")
    a("v_lshlrev_b32 v2, 3, v0")
    a("s_mul_i32 s32, s2, 163840")
    a("s_mul_i32 s33, s2, 81920")
    a(f"s_mul_i32 s34, s2, {CSTRIDE}")
    a("s_waitcnt lgkmcnt(0)")
    a("s_add_u32 s12, s4, s32"); a("s_addc_u32 s13, s5, 0"); a("s_mov_b32 s14, 163840"); a("s_mov_b32 s15, 0x00020000")
    a("s_add_u32 s16, s6, s32"); a("s_addc_u32 s17, s7, 0"); a("s_mov_b32 s18, 163840"); a("s_mov_b32 s19, 0x00020000")
    a("s_add_u32 s20, s8, s33"); a("s_addc_u32 s21, s9, 0"); a("s_mov_b32 s22, 81920"); a("s_mov_b32 s23, 0x00020000")
    def R(j, k): return 8 + 8 * j + k
    def ANG(j): return 88 + 2 * j
    a("v_mov_b32 v4, 0"); a("v_mov_b32 v5, 0")
    a("ds_write_b64 v2, v[4:5]")
    a("ds_write_b64 v2, v[4:5] offset:8192")
    def ld_idx(j):
        a(f"s_mov_b32 s36, {j*16384}")
        a(f"buffer_load_dwordx4 v[{R(j,0)}:{R(j,3)}], v1, s[16:19], s36 offen nt")
        a(f"buffer_load_dwordx4 v[{R(j,4)}:{R(j,7)}], v1, s[12:15], s36 offen nt")
    def ld_ang(j):
        a(f"s_mov_b32 s37, {j*8192}")
        a(f"buffer_load_dwordx2 v[{ANG(j)}:{ANG(j)+1}], v2, s[20:23], s37 offen nt")
    D = opt.get("p1d", 4)
    for j in range(D): ld_idx(j)
    a("s_add_u32 s24, s10, s34"); a("s_addc_u32 s25, s11, 0"); a(f"s_mov_b32 s26, {CSTRIDE}"); a("s_mov_b32 s27, 0x00020000")
    a(f"s_add_u32 s28, s10, {TABOFF}"); a("s_addc_u32 s29, s11, 0"); a(f"s_mov_b32 s30, {TABSIZE}"); a("s_mov_b32 s31, 0x00020000")
    a("s_mov_b32 s40, 6710887")
    a("s_mov_b32 s41, 67109")
    a("s_mov_b32 s42, -640")
    a(f"s_mov_b32 s44, {64<<22}")
    a("s_mov_b32 s45, 0x05040100")
    a("s_mov_b32 s46, 0x05040302")
    a("v_mov_b32 v3, 1")
    a("v_lshrrev_b32 v4, 6, v0")
    a("s_nop 0")
    a("v_readfirstlane_b32 s47, v4")
    a("s_waitcnt lgkmcnt(0)")
    a("s_barrier")
    mk()
    B = [108 + k for k in range(4)]; S = [112 + k for k in range(4)]
    E = [116 + k for k in range(4)]; RW = [120 + k for k in range(4)]
    issued = 2 * D
    for j in range(10):
        if j + D < 10: ld_idx(j + D); issued += 2
        if j + D == 9 or (D >= 10 and j == 0):
            for q in range(10): ld_ang(q)
            issued += 10
        a(f"s_waitcnt vmcnt({min(63, issued - 2*(j+1))})")
        X = [R(j, k) for k in range(4)]; Y = [R(j, 4 + k) for k in range(4)]
        for k in range(4): a(f"v_mul_hi_u32 v{B[k]}, v{X[k]}, s40")
        for k in range(4): a(f"v_mul_hi_u32 v{S[k]}, v{Y[k]}, s41")
        for k in range(4): a(f"v_mad_i32_i24 v{E[k]}, v{B[k]}, s42, v{X[k]}")
        for k in range(4): a(f"v_lshl_add_u32 v{RW[k]}, v{Y[k]}, 1, s44")
        for k in range(4): a(f"v_lshl_add_u32 v{B[k]}, v{S[k]}, 9, v{B[k]}")
        for k in range(4): a(f"v_lshl_add_u32 v{R(j,2*k)}, v{E[k]}, 22, v{RW[k]}")
        for k in range(4): a(f"v_lshlrev_b32 v{R(j,2*k+1)}, 2, v{B[k]}")
        for k in range(4): a(f"ds_add_u32 v{R(j,2*k+1)}, v3")
    a("s_waitcnt lgkmcnt(0)")
    mk()
    a("s_barrier")
    mk()
    L1 = "L_p1_noscan1"
    a("s_cmp_ge_u32 s47, 8")
    a(f"s_cbranch_scc1 {L1}")
    a("v_mul_u32_u24 v1, 20, v0")
    a("ds_read2_b32 v[108:109], v1 offset0:0 offset1:1")
    a("ds_read2_b32 v[110:111], v1 offset0:2 offset1:3")
    a("ds_read_b32 v2, v1 offset:16")
    a("v_and_b32 v126, 63, v0"); a("v_lshlrev_b32 v126, 2, v126")
    a("s_waitcnt lgkmcnt(0)")
    for i in range(4): a(f"v_add_u32 v{112+i}, 1, v{108+i}")
    a("v_add_u32 v4, 1, v2")
    for i in range(4): a(f"v_and_b32 v{112+i}, -2, v{112+i}")
    a("v_and_b32 v4, -2, v4")
    a("v_add_u32 v116, v112, v113"); a("v_add_u32 v117, v114, v115"); a("v_add_u32 v116, v116, v117")
    a("v_add_u32 v116, v116, v4")
    a("v_mov_b32 v117, v116")
    a("s_nop 1")
    for sh in (1, 2, 4, 8):
        a(f"v_add_u32_dpp v117, v117, v117 row_shr:{sh} row_mask:0xf bank_mask:0xf bound_ctrl:0")
        a("s_nop 1")
    a("v_add_u32_dpp v117, v117, v117 row_bcast:15 row_mask:0xa bank_mask:0xf")
    a("s_nop 1")
    a("v_add_u32_dpp v117, v117, v117 row_bcast:31 row_mask:0xc bank_mask:0xf")
    a("s_nop 1")
    a("v_readlane_b32 s48, v117, 63")
    a("s_add_u32 s49, s47, 1")
    a("s_lshl_b32 s50, -1, s49")
    a("s_and_b32 s50, s50, 0x1ff")
    a("v_mov_b32 v118, s48")
    a("s_mov_b32 exec_lo, s50"); a("s_mov_b32 exec_hi, 0")
    a(f"ds_add_u32 v126, v118 offset:{SCR}")
    a("s_mov_b64 exec, -1")
    a.label(L1)
    a("s_waitcnt lgkmcnt(0)")
    a("s_barrier")
    L2 = "L_p1_noscan2"; L2A = "L_p1_noscan2a"
    a("v_mov_b32 v127, 0")
    a(f"ds_read_b32 v5, v127 offset:{SCR+32}")
    a("s_cmp_ge_u32 s47, 8")
    a(f"s_cbranch_scc1 {L2A}")
    a("s_lshl_b32 s49, s47, 2")
    a("v_mov_b32 v119, s49")
    a(f"ds_read_b32 v119, v119 offset:{SCR}")
    a("s_waitcnt lgkmcnt(0)")
    a("v_readfirstlane_b32 s49, v5")
    a("v_add_u32 v117, v117, v119")
    a("v_sub_u32 v120, v117, v116")
    a("v_add_u32 v121, v120, v112")
    a("v_add_u32 v122, v121, v113")
    a("v_add_u32 v123, v122, v114")
    a("v_add_u32 v124, v123, v115")
    a("v_add_u32 v125, v124, v4")
    a("ds_write2_b32 v1, v120, v121 offset0:0 offset1:1")
    a("ds_write2_b32 v1, v122, v123 offset0:2 offset1:3")
    a("ds_write_b32 v1, v124 offset:16")
    for i in range(5): a(f"v_lshl_or_b32 v{112+i}, v{121+i}, 16, v{120+i}")
    a(f"v_add_u32 v1, {ENT}, v1")
    a("ds_write2_b32 v1, v112, v113 offset0:0 offset1:1")
    a("ds_write2_b32 v1, v114, v115 offset0:2 offset1:3")
    a("ds_write_b32 v1, v116 offset:16")
    a("v_mov_b32 v127, 0xffff0000")
    PADS = [4, 5, 6, 7, 1]
    cs = [108, 109, 110, 111, 2]
    for i in range(5):
        a(f"v_add_u32 v{112+i}, v{120+i}, v{cs[i]}")
        a(f"v_and_b32 v{cs[i]}, 1, v{cs[i]}")
    for i in range(5):
        a(f"v_lshlrev_b32 v{112+i}, 16, v{112+i}")
        a(f"v_cmp_eq_u32 vcc, 1, v{cs[i]}")
        a("s_nop 1")
        a(f"v_cndmask_b32 v{PADS[i]}, v127, v{112+i}, vcc")
    a(f"s_branch {L2}")
    a.label(L2A)
    a("s_waitcnt lgkmcnt(0)")
    a("v_readfirstlane_b32 s49, v5")
    a("s_nop 1")
    for i in range(5): a(f"v_mov_b32 v{PADS[i]}, 0xffff0000")
    a.label(L2)
    a("v_mov_b32 v2, 0")
    a("s_waitcnt lgkmcnt(0)")
    a("s_mul_i32 s51, s49, 6")
    alt = opt.get("alt", 1)
    WB = 98304 if alt else WBYTES
    a(f"s_min_u32 s26, s51, {WB}")
    a("s_barrier")
    L3 = "L_p1_notab"
    a("s_cmp_ge_u32 s47, 8")
    a(f"s_cbranch_scc1 {L3}")
    a("v_lshlrev_b32 v127, 2, v0")
    a(f"v_add_u32 v127, {ENT}, v127")
    for i in range(5): a(f"ds_read_b32 v{112+i}, v127 offset:{i*2048}")
    a("v_lshlrev_b32 v117, 13, v0")
    a("s_lshl_b32 s49, s2, 5")
    a("s_waitcnt lgkmcnt(0)")
    a("buffer_store_dwordx4 v[112:115], v117, s[28:31], s49 offen")
    a("buffer_store_dword v116, v117, s[28:31], s49 offen offset:16")
    a("s_nop 1")
    a.label(L3)
    mk()
    for half in range(2):
        recs = [(j, k) for j in range(5*half, 5*half + 5) for k in range(4)]
        for i, (j, k) in enumerate(recs):
            a(f"ds_add_rtn_u32 v{108+i}, v{R(j,2*k+1)}, v3")
        if half == 0: a("s_waitcnt vmcnt(0)")
        for i, (j, k) in enumerate(recs):
            if i % 4 == 0: a(f"s_waitcnt lgkmcnt({max(0, min(15, 20 - i - 4))})")
            a(f"v_perm_b32 v{R(j,2*k+1)}, v{108+i}, v{ANG(j) + (k>>1)}, {'s45' if k%2==0 else 's46'}")
    mk()
    recs = [(R(j, 2*k), R(j, 2*k+1)) for j in range(10) for k in range(4)] + [(2, p) for p in PADS]
    TMP = [96, 97, 98, 99]; TMP2 = [100, 101, 102, 103]
    VA, VB, VC, VG = 104, 105, 106, 107
    pol = {0:"",1:" nt",2:" sc1",3:" sc0 sc1",4:" sc0 sc1 nt"}[opt.get("p1st",0)]
    a(f"v_mul_u32_u24 v{VG}, 12, v0")
    if alt:
        a("s_mov_b32 s50, 0x40000000")
        a(f"v_lshlrev_b32 v{VA}, 4, v0"); a(f"v_add_u32 v{VB}, 65536, v{VA}")
        prs = [(R(j, 2*k)) for j in range(10) for k in range(4)]
        for n_, p in enumerate(PADS):
            q = (88, 90, 92, 94, 100)[n_]
            a(f"v_mov_b32 v{q}, 0"); a(f"v_mov_b32 v{q+1}, v{p}"); prs.append(q)
        for r in range(3):
            for i, p in enumerate(prs):
                t = TMP[i % 4]
                if r > 0: a(f"v_add_u32 v{p+1}, 0xc0000000, v{p+1}")
                a(f"v_cmpx_gt_u32 vcc, s50, v{p+1}")
                a(f"v_lshlrev_b32_sdwa v{t}, 3, v{p+1} dst_sel:DWORD dst_unused:UNUSED_PAD src0_sel:DWORD src1_sel:WORD_1")
                a(f"ds_write_b64 v{t}, v[{p}:{p+1}] offset:{WIN}")
                a("s_mov_b64 exec, -1")
            a("s_waitcnt lgkmcnt(0)")
            mk()
            a("s_barrier")
            mk()
            n = 8 if r < 2 else 6
            for batch in (range(0, 4), range(4, n)):
                for n_, jj in enumerate(batch):
                    q = 108 + 4 * n_
                    av = VA if jj < 4 else VB
                    a(f"ds_read_b128 v[{q}:{q+3}], v{av} offset:{WIN + (jj % 4)*16384}")
                nb = len(batch)
                for n_, jj in enumerate(batch):
                    q = 108 + 4 * n_
                    a(f"s_waitcnt lgkmcnt({nb-1-n_})")
                    a(f"v_perm_b32 v{q+1}, v{q+3}, v{q+1}, s45")
                    a(f"s_mov_b32 s49, {r*WB + jj*12288}")
                    a(f"buffer_store_dwordx3 v[{q}:{q+2}], v{VG}, s[24:27], s49 offen" + pol)
                if batch[0] == 0: a("s_nop 1")
            if r < 2:
                a("s_barrier")
                a(f"s_min_u32 s26, s51, {(r+2)*WB}")
                a("s_nop 1")
    else:
        LOW = WIN + 2 * WREC
        a(f"s_mov_b32 s50, {WREC << 16}")
        a(f"v_lshlrev_b32 v{VA}, 3, v0"); a(f"v_add_u32 v{VA}, {LOW}, v{VA}")
        a(f"v_add_u32 v{VB}, 65536, v{VA}")
        a(f"v_lshlrev_b32 v{VC}, 2, v0")
        for r in range(2):
            for i, (pl, ph) in enumerate(recs):
                t = TMP[i % 4]; t2 = TMP2[i % 4]
                if r > 0: a(f"v_add_u32 v{ph}, {hex((65536 - WREC) << 16)}, v{ph}")
                a(f"v_cmpx_gt_u32 vcc, s50, v{ph}")
                a(f"v_lshlrev_b32_sdwa v{t}, 2, v{ph} dst_sel:DWORD dst_unused:UNUSED_PAD src0_sel:DWORD src1_sel:WORD_1")
                a(f"v_lshlrev_b32_sdwa v{t2}, 1, v{ph} dst_sel:DWORD dst_unused:UNUSED_PAD src0_sel:DWORD src1_sel:WORD_1")
                a(f"ds_write_b32 v{t}, v{pl} offset:{LOW}")
                a(f"ds_write_b16 v{t2}, v{ph} offset:{WIN}")
                a("s_mov_b64 exec, -1")
            a("s_waitcnt lgkmcnt(0)")
            mk()
            a("s_barrier")
            mk()
            for batch in (range(0, 5), range(5, 10), range(10, 11)):
                for n_, jj in enumerate(batch):
                    q = 108 + 4 * n_
                    av = VA if jj < 8 else VB
                    a(f"ds_read_b64 v[{q}:{q+1}], v{av} offset:{(jj % 8)*8192}")
                    a(f"ds_read_b32 v{q+2}, v{VC} offset:{WIN + jj*4096}")
                nb = len(batch)
                for n_, jj in enumerate(batch):
                    q = 108 + 4 * n_
                    a(f"s_waitcnt lgkmcnt({2*(nb-1-n_)})")
                    a(f"s_mov_b32 s49, {r*WBYTES + jj*12288}")
                    a(f"buffer_store_dwordx3 v[{q}:{q+2}], v{VG}, s[24:27], s49 offen" + pol)
                a("s_nop 1")
            if r < 1:
                a("s_barrier")
                a("s_mov_b32 s26, s51")
                a("s_nop 1")
    if opt.get("p1prof"):
        a("s_waitcnt vmcnt(0)")
        mk()
        a("s_waitcnt lgkmcnt(0)")
        a(f"s_cmp_eq_u32 s2, {opt['p1prof']-1}"); a(f"s_cbranch_scc0 {END}")
        a("s_and_b32 s49, s47, 7"); a("s_cmp_eq_u32 s49, 0"); a(f"s_cbranch_scc0 {END}")
        for i in range(nm[0]): a(f"v_writelane_b32 v100, s{64+2*i}, {i}")
        a("s_load_dwordx2 s[52:53], s[0:1], 96"); a("s_waitcnt lgkmcnt(0)")
        a("s_mov_b32 s54, 256"); a("s_mov_b32 s55, 0x00020000")
        a("v_mbcnt_lo_u32_b32 v101, -1, 0"); a("v_mbcnt_hi_u32_b32 v101, -1, v101")
        a("v_cmp_gt_u32 vcc, 16, v101"); a("s_and_saveexec_b64 s[56:57], vcc")
        a("s_lshl_b32 s49, s47, 3"); a("v_lshlrev_b32 v101, 2, v101"); a("v_add_u32 v101, s49, v101")
        a("buffer_store_dword v100, v101, s[52:55], 0 offen"); a("s_waitcnt vmcnt(0)")
    a.label(END)
    a("s_endpgm")

def p1_desc():
    return f""".amdhsa_kernel {NAME}
  .amdhsa_next_free_vgpr 128
  .amdhsa_next_free_sgpr 100
  .amdhsa_accum_offset 128
  .amdhsa_group_segment_fixed_size 0
  .amdhsa_kernarg_size 112
  .amdhsa_user_sgpr_count 2
  .amdhsa_user_sgpr_kernarg_segment_ptr 1
  .amdhsa_system_sgpr_workgroup_id_x 1
.end_amdhsa_kernel
"""
```

```python
from asmlib import Asm
import p1

NAME = "consume_kernel"
NB = 500
STG = 0
CNT = 32768
LOOFF = 33280
NULLG = 30720
HIOFF = 64128
P2_LDS = 79552
CSTRIDE = p1.CSTRIDE
SLICE_B = p1.SROWS * 32
NPH = p1.NSL
M_BYTES = 320000 * 32

V_OWNLO = 1
V_E0, V_E1, V_E2, V_E3, V_E4 = 2, 3, 4, 5, 9
V_H16 = 6
V_TR0, V_TR1 = 7, 8
V_INIT = 10
V_CADDR = 11
V_LT = 14
V_GMAP = 15
V_SRC = 0
V_CINIT, V_GL, V_PROFR, V_QIDX, V_GN0, V_GN1, V_ANA, V_ANB = 39, 43, 47, 51, 55, 59, 63, 67
V_LO = 12
V_USED = 31
V_M = 16
V_B = 20
V_A = 28
V_X = 28
V_EP, V_P0 = 32, 33
PX = [12, 13, 16, 17, 18, 19, 20, 21]; PP = list(range(22, 30))
V_EEFF, V_CNTV, V_BP, V_LANE2, V_BASE, V_FOUR, V_REL = 30, 31, 32, 33, 34, 35, 22
V_OOB = 33
REC = 36
ACC = 68
def acc(t, l): return ACC + 12 * t + 4 * l

S_M = 4
S_REC = 8
S_W, S_PH, S_MODE, S_K, S_WIN0, S_WIN32, S_MORE, S_OVF = 12, 13, 14, 15, 16, 17, 18, 19
S_MASK = 20
S_N4 = 36
S_NXT = 41
S_CUR, S_STG, S_T, S_T2 = 46, 49, 50, 51
S_REM2 = 41
S_FC, S_GM, S_PAR, S_TB = 52, 53, 54, 55
S_BKT = 56
S_WS = 58
S_TMP2 = 60
S_RT, S_GI, S_FL, S_PF = 62, 63, 57, 69
S_STGB = S_STG
S_P1F = 47
S_PSEL = 48
INV2PI = "0.15915494"

def emit_setup(a):
    a(f"s_load_dwordx2 s[{S_M}:{S_M+1}], s[0:1], 0")
    a(f"s_load_dwordx2 s[{S_WS}:{S_WS+1}], s[0:1], 104")
    a(f"s_and_b32 s{S_T}, s2, 7"); a(f"s_lshr_b32 s{S_T2}, s2, 3")
    a(f"s_mul_i32 s{S_BKT}, s{S_T}, 63")
    a(f"s_sub_i32 s{S_T}, s{S_T}, 4"); a(f"s_max_i32 s{S_T}, s{S_T}, 0")
    a(f"s_sub_u32 s{S_BKT}, s{S_BKT}, s{S_T}")
    a(f"s_add_u32 s{S_BKT}, s{S_BKT}, s{S_T2}")
    a(f"v_lshrrev_b32 v20, 6, v0")
    a(f"v_and_b32 v21, 63, v0")
    a(f"v_readfirstlane_b32 s{S_W}, v20")
    a(f"v_and_b32 v22, 15, v21")
    a(f"v_lshrrev_b32 v23, 4, v21")
    a("s_waitcnt lgkmcnt(0)")
    a(f"s_lshl_b32 s{S_T}, s{S_BKT}, 13")
    a(f"s_add_u32 s{S_T}, s{S_T}, {p1.TABOFF}")
    a(f"s_add_u32 s64, s{S_WS}, s{S_T}"); a(f"s_addc_u32 s65, s{S_WS+1}, 0"); a("s_mov_b32 s66, 8000"); a("s_mov_b32 s67, 0x00020000")
    a(f"v_mov_b32 v{V_OOB}, 0x80000000")
    a(f"s_mov_b32 s{S_PF}, 0")
    a(f"s_lshl_b32 s{S_T}, s{S_W}, 5")
    a(f"v_add_u32 v24, s{S_T}, v21")
    a("v_lshlrev_b32 v24, 5, v24")
    a("v_cmp_gt_u32 vcc, 32, v21")
    a("s_nop 1")
    a(f"v_cndmask_b32 v24, v{V_OOB}, v24, vcc")
    a(f"buffer_load_dwordx4 v[{V_E0}:{V_E3}], v24, s[64:67], 0 offen")
    a(f"buffer_load_dword v{V_E4}, v24, s[64:67], 0 offen offset:16")
    a(f"s_or_b32 s{S_M+1}, s{S_M+1}, {16 << 16}")
    a(f"s_mov_b32 s{S_M+2}, 640000"); a(f"s_mov_b32 s{S_M+3}, 0x00020000")
    a(f"s_mov_b32 s{S_REC}, s{S_WS}"); a(f"s_mov_b32 s{S_REC+1}, s{S_WS+1}")
    a(f"s_mov_b32 s{S_REC+2}, {250*CSTRIDE}"); a(f"s_mov_b32 s{S_REC+3}, 0x00020000")
    a("v_and_b32 v26, 3, v21")
    a("v_lshlrev_b32 v26, 3, v26")
    a("v_lshl_add_u32 v26, v23, 5, v26")
    a(f"v_add_u32 v{V_OWNLO}, {LOOFF}, v26")
    a("v_lshrrev_b32 v25, 1, v21")
    a("v_lshrrev_b32 v26, 3, v25")
    a("v_and_b32 v27, 1, v26"); a("v_lshlrev_b32 v27, 2, v27")
    a("v_add_u32 v27, v27, v25"); a("v_and_b32 v27, 7, v27")
    a("v_lshl_add_u32 v27, v26, 3, v27")
    a("v_lshlrev_b32 v27, 2, v27"); a(f"v_add_u32 v{V_GMAP}, {LOOFF}, v27")
    a(f"v_and_b32 v{V_H16}, 1, v21")
    a("v_lshrrev_b32 v25, 2, v22")
    a("v_and_b32 v26, 1, v23"); a("v_lshlrev_b32 v26, 2, v26")
    a("v_add_u32 v25, v25, v26")
    a("v_lshl_add_u32 v25, v23, 3, v25")
    a("v_and_b32 v26, 3, v21")
    a("v_lshlrev_b32 v26, 3, v26")
    a("v_lshl_add_u32 v25, v25, 5, v26")
    a(f"s_lshl_b32 s{S_STG}, s{S_W}, 12")
    a(f"v_add_u32 v{V_TR0}, s{S_STG}, v25")
    a(f"v_xor_b32 v{V_TR1}, 128, v{V_TR0}")
    a(f"s_mul_i32 s{S_TB}, s{S_W}, 5")
    a(f"s_add_u32 s{S_TB}, s{S_TB}, 4")
    a(f"s_mul_i32 s{S_CUR}, s{S_W}, {5*768}")
    a("v_lshlrev_b32 v25, 1, v22")
    a(f"v_lshl_or_b32 v{V_LT}, v25, 16, v25")
    a("v_and_b32 v25, 31, v21"); a("v_lshlrev_b32 v25, 2, v25"); a("v_mov_b32 v26, -1")
    a(f"ds_write_b32 v25, v26 offset:{LOOFF+NULLG}")
    a("v_subrev_u32 v25, 4, v21")
    a("v_mul_u32_u24 v26, 768, v25")
    a(f"v_mov_b32 v{V_INIT}, 0x40000000")
    a("v_cmp_gt_u32 vcc, 40, v25")
    a("s_nop 1")
    a(f"v_cndmask_b32 v{V_INIT}, v{V_INIT}, v26, vcc")
    a("v_cmp_eq_u32 vcc, 56, v21")
    a("s_nop 1")
    a(f"v_cndmask_b32 v{V_INIT}, v{V_INIT}, 0, vcc") if False else None
    a("v_mov_b32 v26, 0")
    a(f"v_cndmask_b32 v{V_INIT}, v{V_INIT}, v26, vcc")
    a(f"v_lshlrev_b32 v{V_CADDR}, 2, v21")
    a(f"ds_write_b32 v{V_CADDR}, v{V_INIT} offset:{CNT}")
    a(f"ds_write_b32 v{V_CADDR}, v{V_INIT} offset:{CNT+256}")
    a(f"v_mov_b32 v{V_CINIT}, v{V_INIT}")
    for i in range(60): a(f"v_mov_b32 v{ACC+i}, 0")
    a(f"s_mov_b32 s{S_FC}, 0xfc")
    a(f"s_mov_b32 s{S_GM}, 0xffffe")
    a(f"s_mov_b32 s{S_P1F}, 0x001f001f"); a(f"s_mov_b32 s{S_PSEL}, 0x07060302")
    a(f"s_mov_b32 s{S_PAR}, 0")
    a(f"s_mov_b32 s{S_PH}, 0")
    a("s_waitcnt vmcnt(0) lgkmcnt(0)")
    a("s_barrier")

def emit_pconst(a):
    a(f"v_mbcnt_lo_u32_b32 v{V_REL}, -1, 0"); a(f"v_mbcnt_hi_u32_b32 v{V_REL}, -1, v{V_REL}")
    a(f"s_lshl_b32 s{S_T}, s{S_W}, 5")
    a(f"v_lshrrev_b32 v{V_BP}, 4, v{V_REL}")
    a(f"v_and_b32 v{V_LANE2}, 15, v{V_REL}")
    a(f"v_add_u32 v{V_BASE}, s{S_T}, v{V_BP}")
    a(f"s_mov_b32 s{S_T2}, {CSTRIDE}")
    a(f"v_lshlrev_b32 v{V_BP}, 2, v{V_BP}")
    a(f"v_mul_lo_u32 v{V_BASE}, v{V_BASE}, s{S_T2}")
    a(f"v_lshlrev_b32 v{V_LANE2}, 1, v{V_LANE2}")
    a(f"v_mov_b32 v{V_FOUR}, 4")

def emit_addr(a, zero_win, src=None):
    X = PX
    src = V_EEFF if src is None else src
    for i in range(8):
        a(f"ds_bpermute_b32 v{X[i]}, v{V_BP}, v{src} offset:{16*i}")
    rel = V_LANE2
    if not zero_win:
        a(f"v_add_u32 v{V_REL}, s{S_WIN32}, v{V_LANE2}"); rel = V_REL
    a("s_waitcnt lgkmcnt(0)")
    for i in range(8):
        a(f"v_add_u32_sdwa v{REC+4*i}, v{X[i]}, v{rel} dst_sel:DWORD dst_unused:UNUSED_PAD src0_sel:WORD_0 src1_sel:DWORD")
    for i in range(8):
        a(f"v_cmp_lt_u32_sdwa s[{S_MASK+2*i}:{S_MASK+2*i+1}], v{REC+4*i}, v{X[i]} src0_sel:DWORD src1_sel:WORD_1")
    for i in range(8):
        a(f"v_mad_u32_u24 v{REC+4*i}, v{REC+4*i}, 6, v{V_BASE}")

def emit_rload(a, i, last=True):
    a(f"s_mov_b32 s{S_RT}, {i*4*CSTRIDE}")
    a(f"s_mov_b64 exec, s[{S_MASK+2*i}:{S_MASK+2*i+1}]")
    a(f"buffer_load_dwordx3 v[{REC+4*i}:{REC+4*i+2}], v{REC+4*i}, s[{S_REC}:{S_REC+3}], s{S_RT} offen" + (" nt" if OPT.get("nt") else ""))
    if last: a("s_mov_b64 exec, -1")

def emit_bin(a, par):
    cnt = CNT + 256 * par
    LO = (0, 2) if OPT.get("alt", 1) else (0, 1); AR = 1 if OPT.get("alt", 1) else 2
    X = PX; P = PP
    for h in range(2):
        a(f"s_waitcnt vmcnt({4 if h == 0 else 0})")
        for ii in range(4):
            i = 4 * h + ii
            a(f"s_mov_b64 exec, s[{S_MASK+2*i}:{S_MASK+2*i+1}]")
            for r in range(2):
                A = X[2*ii + r]
                a(f"v_and_b32_sdwa v{A}, s{S_FC}, v{REC+4*i+LO[r]} dst_sel:DWORD dst_unused:UNUSED_PAD src0_sel:DWORD src1_sel:BYTE_3")
                a(f"ds_add_rtn_u32 v{A}, v{A}, v{V_FOUR} offset:{cnt}")
        a("s_mov_b64 exec, -1")
        a("s_waitcnt lgkmcnt(0)")
        for ii in range(4):
            i = 4 * h + ii
            a(f"s_mov_b64 exec, s[{S_MASK+2*i}:{S_MASK+2*i+1}]")
            for r in range(2):
                A = X[2*ii + r]; A2 = P[2*ii + r]
                a(f"ds_write_b32 v{A}, v{REC+4*i+LO[r]} offset:{LOOFF}")
                a(f"v_lshrrev_b32 v{A2}, 1, v{A}")
                if r == 0: a(f"ds_write_b16 v{A2}, v{REC+4*i+AR} offset:{HIOFF}")
                else: a(f"ds_write_b16_d16_hi v{A2}, v{REC+4*i+AR} offset:{HIOFF}")
        a("s_mov_b64 exec, -1")

OPT = {}
PROF_S = 68
V_PROF = 35
def mark(a):
    if not OPT.get("prof"): return
    a("s_memtime s[70:71]")
    a("s_waitcnt lgkmcnt(0)")
    a(f"s_mov_b32 m0, s{PROF_S}")
    a("s_nop 0")
    a(f"v_writelane_b32 v{OPT['vprof']}, s70, m0")
    a(f"s_add_u32 s{PROF_S}, s{PROF_S}, 1")
def prof_out(a):
    if not OPT.get("prof"): return
    L = a.newlabel("noprof")
    a("s_memrealtime s[70:71]"); a("s_waitcnt lgkmcnt(0)"); a("s_sub_u32 s70, s70, s78")
    a(f"v_writelane_b32 v{OPT['vprof']}, s70, 23")
    a(f"s_cmp_eq_u32 s2, {OPT['prof']-1}")
    a(f"s_cbranch_scc0 {L}")
    a(f"s_cmp_lt_u32 s{S_W}, 2")
    a(f"s_cbranch_scc0 {L}")
    a("s_load_dwordx2 s[72:73], s[0:1], 96")
    a("s_waitcnt lgkmcnt(0)")
    a("s_mov_b32 s74, 256"); a("s_mov_b32 s75, 0x00020000")
    a("v_mbcnt_lo_u32_b32 v60, -1, 0"); a("v_mbcnt_hi_u32_b32 v60, -1, v60")
    a("v_cmp_gt_u32 vcc, 24, v60"); a("s_and_saveexec_b64 s[70:71], vcc")
    a(f"s_mul_i32 s70, s{S_W}, 96"); a("v_lshlrev_b32 v60, 2, v60"); a("v_add_u32 v60, s70, v60")
    a(f"buffer_store_dword v{OPT['vprof']}, v60, s[72:75], 0 offen")
    a("s_waitcnt vmcnt(0)")
    a.label(L)
def GPOL():
    return {0: "", 1: "nt ", 2: "sc1 ", 3: "sc0 sc1 ", 4: "sc0 ", 5: "sc0 nt ", 6: "sc1 nt "}[OPT.get("gpol", 0)]
def emit_gissue(a, stage):
    a(f"s_add_u32 m0, s{S_STGB}, {2048*stage}")
    a(f"v_and_or_b32 v{V_GN0}, v{V_GN0}, s{S_GM}, v{V_H16}")
    a(f"v_and_or_b32 v{V_GN1}, v{V_GN1}, s{S_GM}, v{V_H16}")
    if not OPT.get("no_dma"): a(f"buffer_load_dwordx4 v{V_GN0}, s[{S_M}:{S_M+3}], 0 idxen {GPOL()}lds")
    a(f"s_add_u32 m0, s{S_STGB}, {2048*stage+1024}")
    a(f"s_add_u32 s{S_T}, s{S_GI}, 1")
    if not OPT.get("no_dma"): a(f"buffer_load_dwordx4 v{V_GN1}, s[{S_M}:{S_M+3}], 0 idxen {GPOL()}lds")

def emit_gread(a):
    a(f"v_readlane_b32 s{S_T2}, v{V_GL}, s{S_GI}")
    a(f"v_readlane_b32 s{S_T}, v{V_GL}, s{S_T}")
    a(f"s_add_u32 s{S_GI}, s{S_GI}, 2")
    a(f"v_add_u32 v{V_GN0}, s{S_T2}, v{V_GMAP}")
    a(f"v_add_u32 v{V_GN1}, s{S_T}, v{V_GMAP}")
    a(f"ds_read_b32 v{V_GN0}, v{V_GN0}")
    a(f"ds_read_b32 v{V_GN1}, v{V_GN1}")

def emit_obase(a):
    a(f"ds_bpermute_b32 v{V_ANA}, v{V_QIDX}, v{V_GL}")
    a(f"v_add_u32 v{V_QIDX}, 16, v{V_QIDX}")

def emit_oread(a):
    a(f"v_add_u32 v{V_ANA}, v{V_ANA}, v{V_OWNLO}")
    a(f"v_lshrrev_b32 v{V_ANB}, 1, v{V_ANA}")
    a(f"ds_read_b64 v[{V_LO}:{V_LO+1}], v{V_ANA}")
    a(f"ds_read_u16_d16_hi v{V_ANA}, v{V_ANB} offset:{HIOFF - LOOFF//2}")
    a(f"ds_read_u16_d16_hi v{V_ANB}, v{V_ANB} offset:{HIOFF - LOOFF//2 + 2}")

def emit_f2(a):
    if OPT.get("no_f2"): return
    an = (V_ANA, V_ANB)
    T = (20, 21); U = (22, 23); C1 = (24, 25); E = 26
    for i in range(2): a(f"v_mul_f32 v{T[i]}, {INV2PI}, v{an[i]}")
    for i in range(2): a(f"v_mul_f32 v{U[i]}, 0x40400000, v{an[i]}")
    a(f"v_perm_b32 v{E}, v{V_LO+1}, v{V_LO}, s{S_PSEL}")
    for i in range(2): a(f"v_cvt_pk_bf16_f32 v{U[i]}, 0, v{U[i]}")
    for i in range(2): a(f"v_cos_f32 v{T[i]}, v{T[i]}")
    for i in range(2): a(f"v_mul_f32 v{U[i]}, {INV2PI}, v{U[i]}")
    a(f"v_pk_lshrrev_b16 v{E}, 5, v{E} op_sel_hi:[0,1]")
    for i in range(2): a(f"v_cos_f32 v{U[i]}, v{U[i]}")
    for i in range(2): a(f"v_add_f32 v{C1[i]}, v{T[i]}, v{T[i]}")
    a(f"v_and_b32 v{V_EP}, s{S_P1F}, v{E}")
    for i in range(2): a(f"v_fma_f32 v{C1[i]}, v{C1[i]}, v{T[i]}, -1.0")
    a(f"v_cvt_pk_bf16_f32 v{V_P0}, v{T[0]}, v{T[1]}")
    a(f"v_cvt_pk_bf16_f32 v{V_P0+2}, v{U[0]}, v{U[1]}")
    a(f"v_cvt_pk_bf16_f32 v{V_P0+1}, v{C1[0]}, v{C1[1]}")

def mfma(a, t, l, breg):
    c = acc(t, l)
    a(f"v_mfma_f32_16x16x32_bf16 v[{c}:{c+3}], v[{V_A}:{V_A+3}], v[{breg}:{breg+3}], v[{c}:{c+3}]")

def emit_group(a, t, q):
    bc = [f"row_newbcast:{4*q+p} row_mask:0xf bank_mask:0xf" for p in range(4)]
    nob = OPT.get("no_b", 0)
    if not nob & 1:
        for p in range(4): a(f"v_xor_b32_dpp v{V_M+p}, v{V_EP}, v{V_LT} {bc[p]}")
        for p in range(4): a(f"v_pk_add_u16 v{V_M+p}, v{V_M+p}, -1")
        for p in range(4): a(f"v_pk_ashrrev_i16 v{V_M+p}, 15, v{V_M+p} op_sel_hi:[0,1]")
    def bfr(l):
        if nob & 2: return
        B = V_B + 4 * (l & 1)
        for p in range(4): a(f"v_and_b32_dpp v{B+p}, v{V_P0+l}, v{V_M+p} {bc[p]}")
    bfr(0); bfr(1)
    a("s_waitcnt lgkmcnt(0)")
    mfma(a, t, 0, V_B); mfma(a, t, 1, V_B + 4)
    bfr(2)
    a("s_nop 1")
    mfma(a, t, 2, V_B)

MV_L = (V_GL, V_QIDX, V_GN0); MV_H = (V_GN1, V_ANA, V_ANB)
def emit_mvwrite(a):
    LN, J4, DA, DB = 16, 17, 19, 23
    a(f"v_and_b32 v{LN}, 0xff, v{V_CADDR}")
    a(f"v_and_b32 v{J4}, 0x7c, v{LN}")
    a(f"v_lshrrev_b32 v{DA}, 7, v{LN}")
    a(f"v_mul_u32_u24 v{DA}, 768, v{DA}")
    a(f"v_add3_u32 v{DA}, v{DA}, s{S_CUR}, v{J4}")
    a(f"v_lshrrev_b32 v{DB}, 1, v{DA}")
    a(f"v_add_u32 v{DB}, 4096, v{DB}")
    a("s_waitcnt lgkmcnt(0)")
    for r in range(3):
        if r == 2: a("s_mov_b32 exec_hi, 0")
        a(f"ds_write_b32 v{DA}, v{MV_L[r]} offset:{LOOFF + 1536*r}")
        a(f"ds_write_b16 v{DB}, v{MV_H[r]} offset:{HIOFF - 4096 + 768*r}")
    a("s_mov_b64 exec, -1")

def emit_consume(a):
    S_G = S_N4
    NOFL = a.newlabel("nofl"); TILES = a.newlabel("tiles"); CEND = a.newlabel("cend"); NOMV = a.newlabel("nomv")
    for t in range(5):
        a(f"s_add_u32 s{S_T}, s{S_TB}, {t}")
        a(f"v_readlane_b32 s{S_G+t}, v{V_USED}, s{S_T}")
    a(f"v_and_b32 v{V_X}, 0xff, v{V_CADDR}")
    a(f"s_cmp_eq_u32 s{S_FL}, 0")
    a(f"s_cbranch_scc1 {NOFL}")
    a(f"v_mov_b32 v{V_X+1}, -1")
    for t in range(5):
        a(f"s_add_u32 s{S_T}, s{S_G+t}, 127")
        a(f"s_andn2_b32 s{S_T}, s{S_T}, 127")
        a(f"v_add_u32 v{V_X+2}, s{S_G+t}, v{V_X}")
        a(f"v_cmpx_gt_u32 vcc, s{S_T}, v{V_X+2}")
        a(f"s_add_u32 s{S_T2}, s{S_CUR}, {t*768}")
        a(f"v_add_u32 v{V_X+2}, s{S_T2}, v{V_X+2}")
        a(f"ds_write_b32 v{V_X+2}, v{V_X+1} offset:{LOOFF}")
        a("s_mov_b64 exec, -1")
        a(f"s_mov_b32 s{S_G+t}, s{S_T}")
    a.label(NOFL)
    for t in range(5): a(f"s_lshr_b32 s{S_G+t}, s{S_G+t}, 7")
    a(f"v_mov_b32 v{V_GL}, s{S_CUR}")
    a(f"s_mov_b32 s{S_T}, 0")
    for t in range(1, 5):
        a(f"s_add_u32 s{S_T}, s{S_T}, s{S_G+t-1}")
        a(f"s_lshl_b32 s{S_T2}, s{S_T}, 7")
        a(f"s_sub_u32 s{S_T2}, s{S_CUR}, s{S_T2}")
        a(f"s_add_u32 s{S_T2}, s{S_T2}, {t*768}")
        a(f"s_lshl_b64 exec, -1, s{S_T}")
        a(f"v_mov_b32 v{V_GL}, s{S_T2}")
    a(f"s_add_u32 s{S_T}, s{S_T}, s{S_G+4}")
    a("s_mov_b64 exec, -1")
    a(f"v_lshl_add_u32 v{V_GL}, v{V_X}, 5, v{V_GL}")
    a(f"s_lshl_b64 exec, -1, s{S_T}")
    a(f"v_mov_b32 v{V_GL}, {NULLG}")
    a("s_mov_b64 exec, -1")
    a(f"s_cmp_eq_u32 s{S_T}, 0")
    a(f"s_cbranch_scc1 {CEND}")
    a(f"v_lshrrev_b32 v{V_QIDX}, 2, v{V_X}"); a(f"v_and_b32 v{V_QIDX}, 12, v{V_QIDX}")
    emit_obase(a)
    a(f"s_mov_b32 s{S_GI}, 0"); a(f"s_mov_b32 s{S_T}, 1")
    emit_gread(a)
    a("s_waitcnt lgkmcnt(0)")
    emit_oread(a)
    emit_gissue(a, 0)
    emit_gread(a)
    a("s_waitcnt lgkmcnt(2)")
    emit_f2(a)
    ENT = [[a.newlabel(f"en{t}_{q}_") for q in range(4)] for t in range(5)]
    BODY = [[a.newlabel(f"bd{t}_{q}_") for q in range(4)] for t in range(5)]
    def ent(t, q): return ENT[t][q] if t < 5 else CEND
    a(f"s_branch {ENT[0][0]}")
    for t in range(5):
        for q in range(4):
            a.label(BODY[t][q])
            if q in (0, 2):
                if q == 0: a("s_waitcnt lgkmcnt(0)")
                emit_gissue(a, 1 - (q >> 1))
                emit_gread(a)
                if q == 0: emit_obase(a)
                a("s_waitcnt vmcnt(2)")
            off = (q >> 1) * 2048 + (q & 1) * 1024
            a(f"ds_read_b64_tr_b16 v[{V_A}:{V_A+1}], v{V_TR0} offset:{off}")
            a(f"ds_read_b64_tr_b16 v[{V_A+2}:{V_A+3}], v{V_TR1} offset:{off}")
            if q == 1: emit_oread(a)
            emit_group(a, t, q)
            if q == 3: emit_f2(a)
            a(f"s_sub_u32 s{S_REM2}, s{S_REM2}, 1")
            a(f"s_cbranch_scc1 {ent(t+1, (q+1) & 3)}")
        a(f"s_branch {BODY[t][0]}")
    for t in range(5):
        for q in range(4):
            a.label(ENT[t][q])
            a(f"s_sub_u32 s{S_REM2}, s{S_G+t}, 1")
            a(f"s_cbranch_scc0 {BODY[t][q]}")
            a(f"s_branch {ent(t+1, q)}")
    a.label(CEND)
    a(f"s_cmp_eq_u32 s{S_FL}, 0")
    a(f"s_cbranch_scc0 {NOMV}")
    LN, J4, IX = 16, 17, 18
    SR = (20, 21, 22); HS = (24, 25, 26)
    a(f"v_and_b32 v{LN}, 0xff, v{V_CADDR}")
    a(f"v_and_b32 v{J4}, 0x7c, v{LN}")
    a(f"v_lshrrev_b32 v{IX}, 7, v{LN}")
    a(f"v_add_u32 v{IX}, s{S_TB}, v{IX}")
    a(f"v_lshlrev_b32 v{IX}, 2, v{IX}")
    for r in range(3): a(f"ds_bpermute_b32 v{SR[r]}, v{IX}, v{V_SRC} offset:{8*r}")
    a("s_waitcnt lgkmcnt(0)")
    for r in range(3):
        a(f"v_add_u32 v{SR[r]}, v{SR[r]}, v{J4}")
        a(f"v_lshrrev_b32 v{HS[r]}, 1, v{SR[r]}")
        a(f"ds_read_b32 v{MV_L[r]}, v{SR[r]} offset:{LOOFF}")
        a(f"ds_read_u16 v{MV_H[r]}, v{HS[r]} offset:{HIOFF}")
    emit_mvwrite(a)
    a.label(NOMV)

def emit_dbg_s(a):
    a(f"s_add_u32 s64, s{S_WS}, 0x6000000"); a(f"s_addc_u32 s65, s{S_WS+1}, 0"); a("s_mov_b32 s66, 61440000"); a("s_mov_b32 s67, 0x00020000")
    a("v_mbcnt_lo_u32_b32 v21, -1, 0"); a("v_mbcnt_hi_u32_b32 v21, -1, v21"); a(f"v_and_b32 v22, 15, v21"); a(f"v_lshrrev_b32 v23, 4, v21")
    a(f"s_mul_i32 s{S_T}, s{S_BKT}, 640"); a(f"s_mul_i32 s{S_T2}, s{S_W}, 80"); a(f"s_add_u32 s{S_T}, s{S_T}, s{S_T2}")
    a(f"v_add_u32 v28, s{S_T}, v22")
    a(f"v_mul_u32_u24 v28, 192, v28"); a("v_lshl_add_u32 v28, v23, 4, v28")
    for t in range(5):
        for l in range(3):
            a(f"s_mov_b32 s{S_T}, {t*16*192 + l*64}")
            a(f"buffer_store_dwordx4 v[{acc(t,l)}:{acc(t,l)+3}], v28, s[64:67], s{S_T} offen")
    a("s_waitcnt vmcnt(0)")

def emit_epilogue(a):
    a("s_load_dwordx2 s[20:21], s[0:1], 72")
    a("s_load_dwordx2 s[24:25], s[0:1], 80")
    a("s_load_dwordx2 s[28:29], s[0:1], 56")
    a("s_load_dwordx2 s[32:33], s[0:1], 64")
    a("s_load_dwordx2 s[36:37], s[0:1], 24")
    a("s_load_dwordx2 s[40:41], s[0:1], 40")
    a("s_load_dwordx2 s[44:45], s[0:1], 88")
    a("s_load_dwordx2 s[64:65], s[0:1], 0")
    for base, size in ((20, 512), (24, 512), (28, 256), (32, 768), (36, 640000), (40, 16), (44, M_BYTES), (64, M_BYTES)):
        a(f"s_mov_b32 s{base+2}, {size}"); a(f"s_mov_b32 s{base+3}, 0x00020000")
    a("v_mbcnt_lo_u32_b32 v21, -1, 0"); a("v_mbcnt_hi_u32_b32 v21, -1, v21")
    a(f"v_and_b32 v22, 15, v21")
    a(f"v_lshrrev_b32 v23, 4, v21")
    a(f"v_lshlrev_b32 v24, 4, v21")
    a(f"s_lshl_b32 s{S_STG}, s{S_W}, 12")
    a("s_waitcnt lgkmcnt(0)")
    for k, base in enumerate((20, 24, 28, 32)):
        a(f"s_add_u32 m0, s{S_STG}, {1024*k}")
        a("s_nop 0")
        a(f"buffer_load_dwordx4 v24, s[{base}:{base+3}], 0 offen lds")
    a("v_and_b32 v25, 1, v23"); a("v_lshlrev_b32 v25, 3, v25")
    a("buffer_load_dwordx2 v[26:27], v25, s[40:43], 0 offen")
    a(f"s_mul_i32 s{S_T}, s{S_BKT}, 640")
    a(f"s_mul_i32 s{S_T2}, s{S_W}, 80")
    a(f"s_add_u32 s{S_T}, s{S_T}, s{S_T2}")
    a(f"v_add_u32 v28, s{S_T}, v22")
    a("v_lshlrev_b32 v29, 1, v28")
    a("v_lshlrev_b32 v30, 5, v28")
    a("v_lshl_add_u32 v30, v23, 3, v30")
    for t in range(5):
        a(f"buffer_load_ushort v{31+t}, v29, s[36:39], 0 offen offset:{32*t}")
        a(f"buffer_load_dwordx2 v[{36+2*t}:{37+2*t}], v30, s[64:67], 0 offen offset:{512*t}")
    a(f"v_lshlrev_b32 v25, 3, v21"); a(f"v_add_u32 v25, s{S_STG}, v25")
    a("v_lshrrev_b32 v46, 2, v21")
    a("v_mul_u32_u24 v46, 96, v46")
    a("v_and_b32 v47, 3, v21"); a("v_lshl_add_u32 v46, v47, 3, v46")
    a("v_min_u32 v46, 832, v46")
    a(f"v_add_u32 v46, s{S_STG}, v46")
    a("s_waitcnt vmcnt(0)")
    WD, WU, WR, WS = 48, 50, 52, 54
    a(f"ds_read_b64_tr_b16 v[{WD}:{WD+1}], v25")
    a(f"ds_read_b64_tr_b16 v[{WU}:{WU+1}], v25 offset:1024")
    a(f"ds_read_b64_tr_b16 v[{WR}:{WR+1}], v25 offset:2048")
    for l in range(3):
        a(f"ds_read_b64_tr_b16 v[{WS+2*l}:{WS+2*l+1}], v46 offset:{3072+32*l}")
    a("v_lshlrev_b32 v60, 16, v26"); a("v_and_b32 v61, 0xffff0000, v26")
    a("v_lshlrev_b32 v62, 16, v27"); a("v_and_b32 v63, 0xffff0000, v27")
    a("s_mov_b32 s62, 0xc1200000")
    a("s_mov_b32 s63, 0x3fb8aa3b")
    a("v_cmp_gt_u32 s[60:61], 2, v23")
    a("s_waitcnt lgkmcnt(0)")
    for t in range(5):
        d = 31 + t; mm = 36 + 2 * t
        R = 20
        R = 64
        a(f"v_lshlrev_b32 v{d}, 16, v{d}")
        for i in range(4): a(f"v_sub_f32 v{R+i}, v{d}, v{60+i}")
        for i in range(4): a(f"v_cvt_pk_bf16_f32 v{R+i}, 0, v{R+i}")
        for i in range(4): a(f"v_mul_f32 v{R+i}, v{R+i}, v{R+i}")
        for i in range(4): a(f"v_cvt_pk_bf16_f32 v{R+i}, 0, v{R+i}")
        for i in range(4): a(f"v_mul_f32 v{R+i}, s62, v{R+i}")
        for i in range(4): a(f"v_cvt_pk_bf16_f32 v{R+i}, 0, v{R+i}")
        for i in range(4): a(f"v_mul_f32 v{R+i}, s63, v{R+i}")
        for i in range(4): a(f"v_exp_f32 v{R+i}, v{R+i}")
        a("s_nop 0")
        RB = 46
        a(f"v_cvt_pk_bf16_f32 v{RB}, v{R}, v{R+1}")
        a(f"v_cvt_pk_bf16_f32 v{RB+1}, v{R+2}, v{R+3}")
        a(f"v_cndmask_b32 v{RB}, 0, v{RB}, s[60:61]")
        a(f"v_cndmask_b32 v{RB+1}, 0, v{RB+1}, s[60:61]")
        for l in range(3):
            c = acc(t, l)
            a(f"v_cvt_pk_bf16_f32 v{c}, v{c}, v{c+1}")
            a(f"v_cvt_pk_bf16_f32 v{c+1}, v{c+2}, v{c+3}")
        U = [4, 8, 12]; W = [16, 24, 64]; G = 20
        a("s_nop 1")
        for l in range(3):
            c = acc(t, l)
            a(f"v_mfma_f32_16x16x16_bf16 v[{U[l]}:{U[l]+3}], v[{WD}:{WD+1}], v[{c}:{c+1}], 0")
        for l in range(3):
            a(f"v_mfma_f32_16x16x16_bf16 v[{W[l]}:{W[l]+3}], v[{WS+2*l}:{WS+2*l+1}], v[{RB}:{RB+1}], 0")
        c = acc(t, 0)
        GG = acc(t, 1)
        a(f"v_mfma_f32_16x16x16_bf16 v[{GG}:{GG+3}], v[{WR}:{WR+1}], v[{RB}:{RB+1}], 0")
        a("s_nop 7")
        for r in range(4):
            a(f"v_mul_f32 v{U[0]+r}, v{U[0]+r}, v{W[0]+r}")
        for r in range(4):
            a(f"v_fma_f32 v{U[0]+r}, v{U[1]+r}, v{W[1]+r}, v{U[0]+r}")
        for r in range(4):
            a(f"v_fma_f32 v{U[0]+r}, v{U[2]+r}, v{W[2]+r}, v{U[0]+r}")
        a(f"v_cvt_pk_bf16_f32 v{U[1]}, v{U[0]}, v{U[0]+1}")
        a(f"v_cvt_pk_bf16_f32 v{U[1]+1}, v{U[0]+2}, v{U[0]+3}")
        a("s_nop 1")
        VV = U[2]
        a(f"v_mfma_f32_16x16x16_bf16 v[{VV}:{VV+3}], v[{WU}:{WU+1}], v[{U[1]}:{U[1]+1}], 0")
        for r in range(4): a(f"v_cvt_pk_bf16_f32 v{GG+r}, 0, v{GG+r}")
        a(f"v_lshlrev_b32 v{W[0]}, 16, v{mm}"); a(f"v_and_b32 v{W[0]+1}, 0xffff0000, v{mm}")
        a(f"v_lshlrev_b32 v{W[0]+2}, 16, v{mm+1}"); a(f"v_and_b32 v{W[0]+3}, 0xffff0000, v{mm+1}")
        a("s_nop 1")
        for r in range(4): a(f"v_cvt_pk_bf16_f32 v{VV+r}, 0, v{VV+r}")
        for r in range(4): a(f"v_mul_f32 v{VV+r}, v{VV+r}, v{GG+r}")
        for r in range(4): a(f"v_cvt_pk_bf16_f32 v{VV+r}, 0, v{VV+r}")
        for r in range(4): a(f"v_add_f32 v{VV+r}, v{VV+r}, v{W[0]+r}")
        a(f"v_cvt_pk_bf16_f32 v{mm}, v{VV}, v{VV+1}")
        a(f"v_cvt_pk_bf16_f32 v{mm+1}, v{VV+2}, v{VV+3}")
        a(f"buffer_store_dwordx2 v[{mm}:{mm+1}], v30, s[44:47], 0 offen offset:{512*t}")

def gen_p2(a, opt=None):
    opt = opt or {}
    OPT.clear(); OPT.update(opt)
    a.label(NAME)
    END = "L_p2_end"
    a(f"s_cmp_ge_u32 s2, {NB}")
    a(f"s_cbranch_scc1 {END}")
    if opt.get("prof"):
        OPT["vprof"] = V_PROFR
        a(f"s_mov_b32 s{PROF_S}, 1")
        a("s_memtime s[76:77]")
        a("s_memrealtime s[78:79]")
    emit_setup(a)
    if opt.get("prof"): a(f"v_writelane_b32 v{V_PROFR}, s76, 0")
    PHASE = "L_p2_phase"; ROUND = "L_p2_round"; WLOOP = "L_p2_wloop"; PAR1 = "L_p2_par1"; PDONE = "L_p2_pdone"
    GATE = "L_p2_gate"; GATED = "L_p2_gated"; NOMORE = "L_p2_nomore"; SKIPC = "L_p2_skipc"; SLOW = "L_p2_slow"; PHDONE = "L_p2_phdone"; NEXTK = "L_p2_nextk"
    a.label(PHASE)

    a(f"s_mov_b32 s{S_MODE}, 0"); a(f"s_mov_b32 s{S_K}, 0"); a(f"s_mov_b32 s{S_WIN0}, 0")
    a.label(ROUND)
    mark(a)
    pm = opt.get("prio", 1)
    if pm >= 2: a("s_setprio 3")
    HAVE = "L_p2_have"; BIN = "L_p2_bin"; PFSLOW = "L_p2_pfslow"; PFD = "L_p2_pfd"; NOOVF = "L_p2_noovf"
    emit_pconst(a)
    a(f"v_mov_b32 v{V_EEFF}, v{V_E0}")
    a(f"s_cmp_eq_u32 s{S_MODE}, 0")
    a(f"s_cbranch_scc1 {GATED}")
    a(f"s_lshr_b32 s{S_T}, s{S_K}, 3")
    a(f"s_and_b32 s{S_T2}, s{S_K}, 7")
    a(f"s_lshl_b32 s{S_T2}, s{S_T2}, 2")
    a(f"s_lshl_b32 s{S_T2}, 15, s{S_T2}")
    a(f"s_cmp_eq_u32 s{S_T}, s{S_W}")
    a(f"s_cselect_b32 s{S_TMP2}, s{S_T2}, 0")
    a(f"s_mov_b32 s{S_TMP2+1}, 0")
    a(f"v_cndmask_b32 v{V_EEFF}, 0, v{V_E0}, s[{S_TMP2}:{S_TMP2+1}]")
    a.label(GATED)
    a(f"v_sub_u32_sdwa v{V_CNTV}, v{V_EEFF}, v{V_EEFF} dst_sel:DWORD dst_unused:UNUSED_PAD src0_sel:WORD_1 src1_sel:WORD_0")
    a(f"s_lshl_b32 s{S_WIN32}, s{S_WIN0}, 5")
    a(f"s_cmp_eq_u32 s{S_PF}, 0")
    a(f"s_mov_b32 s{S_PF}, 0")
    a(f"s_cbranch_scc0 {BIN}")
    a.label(WLOOP)
    a("s_waitcnt vmcnt(0)")
    emit_addr(a, False)
    for i in range(8): emit_rload(a, i, i == 7)
    a.label(BIN)
    a(f"s_cmp_eq_u32 s{S_PAR}, 0")
    a(f"s_cbranch_scc0 {PAR1}")
    emit_bin(a, 0)
    a(f"s_branch {PDONE}")
    a.label(PAR1)
    emit_bin(a, 1)
    a.label(PDONE)
    if opt.get("prof2"): mark(a)
    a(f"s_add_u32 s{S_WIN32}, s{S_WIN32}, 32")
    a(f"v_cmp_lt_u32 vcc, s{S_WIN32}, v{V_CNTV}")
    a(f"s_cbranch_vccz {NOMORE}")
    a(f"s_cmp_eq_u32 s{S_MODE}, 0")
    a(f"s_cbranch_scc1 {WLOOP}")
    a(f"v_mov_b32 v20, s{S_PAR}"); a("v_mov_b32 v21, 1")
    a(f"ds_write_b32 v20, v21 offset:{CNT + 56*4}")
    a.label(NOMORE)
    a(f"s_cmp_eq_u32 s{S_MODE}, 0")
    a(f"s_cbranch_scc0 {PFSLOW}")
    emit_addr(a, True, V_E1)
    for i in range(8): emit_rload(a, i, i == 7)
    a(f"s_mov_b32 s{S_PF}, 1")
    a(f"s_branch {PFD}")
    a.label(PFSLOW)
    for i in range(8): a(f"s_mov_b64 s[{S_MASK+2*i}:{S_MASK+2*i+1}], 0")
    a.label(PFD)
    a("s_waitcnt lgkmcnt(0)")
    mark(a)
    a("s_barrier")
    if not opt.get("prof2"): mark(a)
    lv = {1: [3,2,1,0,0], 2: [2,1,0,2,1], 3: [2,2,1,1,0], 4: [2,1,1,0,0], 5: [0,0,0,0,0], 6: [2,1,0,0,0]}.get(pm)
    if lv:
        for ph in range(NPH):
            L = a.newlabel("pr")
            a(f"s_cmp_eq_u32 s{S_PH}, {ph}"); a(f"s_cbranch_scc0 {L}"); a(f"s_setprio {lv[ph]}"); a.label(L)
    a(f"ds_read_b32 v{V_USED}, v{V_CADDR} offset:{CNT}")
    a(f"v_xor_b32 v{V_CADDR}, 256, v{V_CADDR}")
    a(f"s_xor_b32 s{S_PAR}, s{S_PAR}, 256")
    a(f"s_cmp_eq_u32 s{S_PH}, {NPH-1}")
    a(f"s_cselect_b32 s{S_FL}, 1, s{S_MODE}")
    a(f"s_cmp_eq_u32 s{S_FL}, 0")
    a(f"s_cselect_b32 s{S_T2}, 0x7c, 0")
    a("s_waitcnt lgkmcnt(0)")
    a(f"v_readlane_b32 s{S_MORE}, v{V_USED}, 56")
    a(f"v_sub_u32 v{V_USED}, v{V_USED}, v{V_INIT}")
    a(f"s_movk_i32 s{S_T}, 768")
    a(f"v_cmp_lt_u32 vcc, s{S_T}, v{V_USED}")
    a(f"s_mov_b32 s{S_TMP2}, 0xfffffff0"); a(f"s_mov_b32 s{S_TMP2+1}, 0xfff")
    a(f"s_and_b64 s[{S_TMP2}:{S_TMP2+1}], s[{S_TMP2}:{S_TMP2+1}], vcc")
    a(f"s_cselect_b32 s{S_OVF}, 1, 0")
    a(f"s_cbranch_scc0 {NOOVF}")
    a(f"s_mov_b32 s{S_PF}, 0")
    a(f"ds_write_b32 v{V_CADDR}, v{V_CINIT} offset:{CNT}")
    emit_mvwrite(a)
    a(f"v_and_b32 v16, 0x7c, v{V_CADDR}"); a("v_mov_b32 v17, -1")
    a(f"ds_write_b32 v16, v17 offset:{LOOFF+NULLG}")
    a(f"s_branch {SKIPC}")
    a.label(NOOVF)
    a(f"v_and_b32 v{V_CINIT}, s{S_T2}, v{V_USED}")
    a(f"v_and_b32 v{V_SRC}, 0xffffff80, v{V_USED}")
    a(f"v_add_u32 v{V_CINIT}, v{V_CINIT}, v{V_INIT}")
    a(f"v_add_u32 v{V_SRC}, v{V_SRC}, v{V_INIT}")
    a(f"ds_write_b32 v{V_CADDR}, v{V_CINIT} offset:{CNT}")
    emit_consume(a)
    a.label(SKIPC)
    a("s_waitcnt lgkmcnt(0)")
    mark(a)
    a("s_barrier")
    a(f"s_cmp_eq_u32 s{S_OVF}, 0")
    a(f"s_cbranch_scc1 {SLOW}")
    a(f"s_mov_b32 s{S_MODE}, 1"); a(f"s_mov_b32 s{S_K}, 0"); a(f"s_mov_b32 s{S_WIN0}, 0")
    a(f"s_branch {ROUND}")
    a.label(SLOW)
    a(f"s_cmp_eq_u32 s{S_MODE}, 0")
    a(f"s_cbranch_scc1 {PHDONE}")
    a(f"s_cmp_eq_u32 s{S_MORE}, 0")
    a(f"s_cbranch_scc1 {NEXTK}")
    a(f"s_add_u32 s{S_WIN0}, s{S_WIN0}, 1")
    a(f"s_branch {ROUND}")
    a.label(NEXTK)
    a(f"s_mov_b32 s{S_WIN0}, 0")
    a(f"s_add_u32 s{S_K}, s{S_K}, 1")
    a(f"s_cmp_lt_u32 s{S_K}, 64")
    a(f"s_cbranch_scc1 {ROUND}")
    a.label(PHDONE)
    a(f"v_mov_b32 v{V_E0}, v{V_E1}"); a(f"v_mov_b32 v{V_E1}, v{V_E2}"); a(f"v_mov_b32 v{V_E2}, v{V_E3}")
    a(f"v_mov_b32 v{V_E3}, v{V_E4}"); a(f"v_mov_b32 v{V_E4}, 0")
    a(f"s_add_u32 s{S_PH}, s{S_PH}, 1")
    a(f"s_cmp_lt_u32 s{S_PH}, {NPH}")
    a(f"s_cbranch_scc1 {PHASE}")
    if opt.get('dbg_s'): emit_dbg_s(a)
    mark(a)
    a("s_waitcnt vmcnt(0)")
    emit_epilogue(a)
    mark(a)
    prof_out(a)
    a.label(END)
    a("s_endpgm")

def p2_desc(opt=None):
    return f""".amdhsa_kernel {NAME}
  .amdhsa_next_free_vgpr 128
  .amdhsa_next_free_sgpr 80
  .amdhsa_accum_offset 128
  .amdhsa_group_segment_fixed_size 0
  .amdhsa_kernarg_size 112
  .amdhsa_user_sgpr_count 2
  .amdhsa_user_sgpr_kernarg_segment_ptr 1
  .amdhsa_system_sgpr_workgroup_id_x 1
.end_amdhsa_kernel
"""
```
